```python
import torch

def _softmax(x, axis=-1):
    return torch.softmax(x, dim=axis)
def _gelu(x):
    return torch.nn.functional.gelu(x, approximate="tanh")
def _silu(x):
    return torch.nn.functional.silu(x)
def _sigmoid(x):
    return torch.sigmoid(x)
def _layernorm(x, axis=-1, eps=1e-5):
    m = x.mean(dim=axis, keepdim=True)
    v = x.var(dim=axis, keepdim=True, unbiased=False)
    return (x - m) / torch.sqrt(v + eps)
def _scatter_add(tgt, idx, src, axis=0):
    return tgt.clone().index_add_(axis, idx, src)
def _segment_sum(src, seg, n):
    out = torch.zeros((n,) + src.shape[1:], dtype=src.dtype)
    return out.index_add_(0, seg, src)
def _pad(x, pw):
    flat = tuple(v for pair in reversed(pw) for v in pair)
    return torch.nn.functional.pad(x, flat)

kernel_name = 'gated_mix__compressed_kv_cla__sliding_local_dilated__prompt'

def setup_inputs():

    _w = (lambda a: (lambda t: t.to(torch.bfloat16) if t.is_floating_point() else t)(torch.as_tensor(a)))
    def _A_setup():
        B, H, Sq, Sk, D, M = 1, 32, 2048, 2048, 128, 1024
        Dc = 4 * D
        return {
            "x": _w((lambda *s: torch.randn(*s, dtype=torch.bfloat16) * 0.05)(B, Sq, M)),
            "c_kv": _w((lambda *s: torch.randn(*s, dtype=torch.bfloat16) * 1.6)(B, Sk, Dc)),
            "w_q": _w((lambda *s: torch.randn(*s, dtype=torch.bfloat16) * 6.4)(M, H, D) * (M ** -0.5)),
            "w_uk": _w((lambda *s: torch.randn(*s, dtype=torch.bfloat16) * 6.4)(Dc, H, D) * (Dc ** -0.5)),
            "w_uv": _w((lambda *s: torch.randn(*s, dtype=torch.bfloat16) * 1.6)(Dc, H, D) * (Dc ** -0.5)),
            "w_o": _w((lambda *s: torch.randn(*s, dtype=torch.bfloat16) * 1.6)(H, D, M) * ((H * D) ** -0.5)),
        }
    _A_in = _A_setup()

    def _B_setup():
        B, S, D = 1, 2048, 1024
        return {
            "x": _w((lambda *s: torch.randn(*s, dtype=torch.bfloat16) * 0.05)(B, S, D)),
            "wqkv": _w((lambda *s: torch.randn(*s, dtype=torch.bfloat16) * 0.8)(D, 3 * D)),
            "wo": _w((lambda *s: torch.randn(*s, dtype=torch.bfloat16) * 0.05)(D, D)),
        }
    _B_in = _B_setup()

    return {
        "A_x": _A_in["x"],
        "A_c_kv": _A_in["c_kv"],
        "A_w_q": _A_in["w_q"],
        "A_w_uk": _A_in["w_uk"],
        "A_w_uv": _A_in["w_uv"],
        "A_w_o": _A_in["w_o"],
        "B_x": _B_in["x"],
        "B_wqkv": _B_in["wqkv"],
        "B_wo": _B_in["wo"],
        "gate_w": _w((lambda *s: torch.randn(*s, dtype=torch.bfloat16) * 0.05)(1024) * 16.0),
    }

def reference(A_x, A_c_kv, A_w_q, A_w_uk, A_w_uv, A_w_o, B_x, B_wqkv, B_wo, gate_w):
    def _A_ref(x, c_kv, w_q, w_uk, w_uv, w_o):
        B, Sq, M = x.shape[0], x.shape[1], x.shape[2]
        Sk = c_kv.shape[1]
        H, D = w_q.shape[1], w_q.shape[2]
        q = torch.einsum("bqm,mhd->bhqd", x, w_q)
        k = torch.einsum("bkc,chd->bhkd", c_kv, w_uk)
        v = torch.einsum("bkc,chd->bhkd", c_kv, w_uv)
        scores = torch.einsum("bhqd,bhkd->bhqk", q, k) * (D ** -0.5)
        off = Sk - Sq
        qi = torch.arange(Sq)[:, None]
        kj = torch.arange(Sk)[None, :]
        cmask = kj <= (qi + off)
        scores = torch.where(cmask[None, None], scores, -1e9)
        p = _softmax(scores, axis=-1)
        ctx = torch.einsum("bhqk,bhkd->bhqd", p, v)
        return torch.einsum("bhqd,hdm->bqm", ctx, w_o)

    def _B_ref(x, wqkv, wo):
        B, S, D = x.shape
        H = 32; Dh = D // H
        W, dil = 8, 2
        qkv = (lambda x, *d: x.permute(*d))((x @ wqkv).reshape(B, S, 3, H, Dh), 2, 0, 3, 1, 4)
        q, k, v = qkv[0], qkv[1], qkv[2]
        scale = Dh ** -0.5
        pos = torch.arange(S)
        off = torch.arange(W) * dil
        idx = pos[:, None] - off[None, :]
        mask = idx >= 0
        idx_c = torch.where(mask, idx, 0).reshape(-1)
        kg = k[:, :, idx_c, :].reshape(B, H, S, W, Dh)
        vg = v[:, :, idx_c, :].reshape(B, H, S, W, Dh)
        logits = torch.einsum("bhsd,bhswd->bhsw", q, kg) * scale
        logits = torch.where(mask[None, None, :, :], logits, -1e9)
        attn = _softmax(logits, axis=-1)
        o = torch.einsum("bhsw,bhswd->bhsd", attn, vg)
        return (lambda x, *d: x.permute(*d))(o, 0, 2, 1, 3).reshape(B, S, D) @ wo

    x = A_x
    g = _sigmoid((x * gate_w).sum(-1, keepdims=True))
    a = _A_ref(x, A_c_kv, A_w_q, A_w_uk, A_w_uv, A_w_o)
    b = _B_ref(x, B_wqkv, B_wo)
    return g * a + (1 - g) * b
```

```python
import numpy as np, math
from sim import bf16_round, bf16_to_f32
import gen
F = np.float32
def rb(x): return bf16_to_f32(bf16_round(x.astype(F)))
def bits(x): return bf16_round(x.astype(F)).astype(np.uint16)
def make_inputs(seed=0, qscale=1.0):
    r = np.random.default_rng(seed)
    n = lambda *s: rb(r.standard_normal(s, dtype=F))
    d = {}
    d["x"] = rb(n(2048, 1024) * 0.05)
    d["c"] = rb(n(2048, 512) * 1.6)
    d["wq"] = rb(rb(n(1024, 4096) * 6.4) * 1024 ** -0.5 * qscale)
    d["wuk"] = rb(rb(n(512, 4096) * 6.4) * 512 ** -0.5)
    d["wuv"] = rb(rb(n(512, 4096) * 1.6) * 512 ** -0.5)
    d["wo"] = rb(rb(n(4096, 1024) * 1.6) * 4096 ** -0.5)
    d["wqkv"] = rb(n(1024, 3072) * 0.8)
    d["wob"] = rb(n(1024, 1024) * 0.05)
    d["gate"] = rb(rb(n(1024) * 0.05) * 16)
    return d
L = np.arange(64); LR = L & 15; G4 = L >> 4
E = np.arange(8); PERM = (4 * G4[:, None] + (E[None, :] & 3) + 16 * (E[None, :] >> 2))
def kv_head(d, h):
    K = rb(d["c"] @ d["wuk"][:, 128*h:128*h+128]); V = rb(d["c"] @ d["wuv"][:, 128*h:128*h+128])
    return K, V
def kv_layout(K, V):
    o = np.full((66, 16, 64, 8), np.nan, dtype=F)
    for u in range(64):
        for kt in range(2):
            for ds in range(4):
                o[u, 8+kt*4+ds] = K[(32*u + 16*kt + LR)[:, None], 32*ds + PERM]
        for dt in range(8):
            o[u+1, dt] = V[32*u + PERM, (16*dt + LR)[:, None]]
    return o
def attn_head(d, h, K, V):
    q = rb((d["x"] @ d["wq"][:, 128*h:128*h+128]) * F(128 ** -0.5 * math.log2(math.e)))
    s = (q @ K.T).astype(np.float64)
    s[np.triu_indices(2048, 1)] = -np.inf
    p = np.exp2(s - s.max(1, keepdims=True))
    return ((p @ V) / p.sum(1, keepdims=True)).astype(F)
def b_head(d, h):
    w = d["wqkv"]
    q, k, v = [rb(d["x"] @ w[:, 1024*i + 32*h:1024*i + 32*h + 32]) for i in range(3)]
    idx = np.arange(2048)[:, None] - 2 * np.arange(8)[None, :]
    m = idx >= 0; ic = np.where(m, idx, 0)
    lg = np.einsum("sd,swd->sw", q.astype(np.float64), k[ic]) * 32 ** -0.5
    lg = np.where(m, lg, -np.inf)
    p = np.exp(lg - lg.max(1, keepdims=True)); p /= p.sum(1, keepdims=True)
    return np.einsum("sw,swd->sd", p, v[ic]).astype(F)
def ctx_frag(M, rt_g, ks):
    return M[(16*rt_g + LR)[:, None], 32*ks + PERM]
def ctx_layout(cat):
    c = cat.reshape(16, 8, 16, 160, 32)
    return c[:, :, LR[:, None], :, PERM].transpose(2, 4, 3, 0, 1)
def gate(d):
    z = (d["x"].astype(np.float64) * d["gate"]).sum(1)
    return (1 / (1 + np.exp(-z))).astype(F)
```

```python
import re
import numpy as np

U32 = np.uint32
F32 = np.float32
LANES = np.arange(64, dtype=np.uint32)


class SimError(Exception):
    pass


def f2u(x):
    return int(np.array(x, dtype=F32).view(U32))


def bf16_round(x):
    u = np.ascontiguousarray(x, dtype=F32).view(U32).astype(np.uint64)
    r = ((u + 0x7FFF + ((u >> 16) & 1)) >> 16).astype(U32) & 0xFFFF
    nan = np.isnan(x)
    if nan.any():
        r = np.where(nan, U32(0x7FC0), r)
    return r


def bf16_to_f32(u16):
    return (u16.astype(U32) << 16).view(F32)


FCONST = {"0.5": 0.5, "-0.5": -0.5, "1.0": 1.0, "-1.0": -1.0, "2.0": 2.0, "-2.0": -2.0, "4.0": 4.0, "-4.0": -4.0}
SPECIAL = {"vcc": 106, "vcc_lo": 106, "vcc_hi": 107, "m0": 124, "exec": 126, "exec_lo": 126, "exec_hi": 127}


class Op:
    __slots__ = ("kind", "idx", "n", "val", "neg", "abs")

    def __init__(self, t):
        t = t.strip()
        self.neg = self.abs = False
        self.n = 1
        self.val = None
        self.idx = None
        if t in FCONST:
            self.kind = "c"
            self.val = f2u(FCONST[t])
            return
        if t.startswith("-") and t[1:2] in "vsa|" and not t[1:2].isdigit():
            self.neg = True
            t = t[1:]
        if t.startswith("|"):
            self.abs = True
            t = t.strip("|")
        if t in SPECIAL:
            self.kind = "s"
            self.idx = SPECIAL[t]
            self.n = 2 if t in ("vcc", "exec") else 1
            return
        m = re.fullmatch(r"([vsa])(\d+)", t)
        if m:
            self.kind = m.group(1)
            self.idx = int(m.group(2))
        else:
            m = re.fullmatch(r"([vsa])\[(\d+):(\d+)\]", t)
            if m:
                self.kind = m.group(1)
                self.idx = int(m.group(2))
                self.n = int(m.group(3)) - self.idx + 1
            elif t == "off":
                self.kind = "off"
                return
            else:
                try:
                    self.val = int(t, 0) & 0xFFFFFFFFFFFFFFFF
                    self.kind = "c"
                except ValueError:
                    self.kind = "label"
                    self.val = t
                return
        if self.kind == "a":
            self.kind = "v"
            self.idx += 256

    def regs(self):
        if self.kind in ("v", "s"):
            return [(self.kind, self.idx + i) for i in range(self.n)]
        return []


TRANS = ("v_exp_f32", "v_log_f32", "v_rcp_f32", "v_rsq_f32", "v_sqrt_f32")


class Ins:
    __slots__ = ("text", "mn", "ops", "mods", "line", "cls", "defs", "uses", "vdefs", "vuses", "sdefs", "suses", "ws", "cuse", "abuse")

    def __init__(self, text, line):
        self.text = text
        self.line = line
        parts = text.split(None, 1)
        mn = parts[0]
        for suf in ("_e32", "_e64"):
            if mn.endswith(suf):
                mn = mn[:-4]
        self.mn = mn
        rest = parts[1] if len(parts) > 1 else ""
        self.mods = {}
        self.ops = []
        self.ws = 1
        if mn == "s_waitcnt":
            for k, v in re.findall(r"(vmcnt|lgkmcnt|expcnt)\((\d+)\)", rest):
                self.mods[k] = int(v)
        elif mn == "s_getreg_b32":
            self.ops = [Op(rest.split(",")[0])]
        else:
            toks = []
            depth = 0
            cur = ""
            for ch in rest:
                if ch == "[":
                    depth += 1
                if ch == "]":
                    depth -= 1
                if ch == "," and depth == 0:
                    toks.append(cur)
                    cur = ""
                else:
                    cur += ch
            if cur.strip():
                toks.append(cur)
            if toks:
                last = toks[-1].split()
                if mn in ("buffer_wbl2", "buffer_inv"):
                    toks = []
                    ms = last
                else:
                    toks[-1] = last[0]
                    ms = last[1:]
                for m in ms:
                    if ":" in m:
                        k, v = m.split(":", 1)
                        self.mods[k] = v if v.startswith("[") else int(v, 0)
                    else:
                        self.mods[m] = True
            self.ops = [Op(t) for t in toks]
        self.classify()

    def classify(self):
        mn, o = self.mn, self.ops
        defs, uses = [], []
        self.cuse = []
        self.abuse = []
        R = lambda i: o[i].regs()
        if mn.startswith("v_mfma") or mn.startswith("v_smfmac"):
            self.cls = "mfma"
            defs = R(0)
            self.abuse = [r[1] for r in R(1) + R(2)]
            if mn.startswith("v_smfmac"):
                self.abuse += [r[1] for r in R(3)]
                self.cuse = [r[1] for r in R(0)]
                uses = R(0) + R(1) + R(2) + R(3)
            else:
                self.cuse = [r[1] for r in R(3)]
                uses = R(1) + R(2) + R(3)
        elif mn.startswith("v_"):
            self.cls = "trans" if mn in TRANS else "valu"
            if mn.startswith("v_permlane"):
                defs = R(0) + R(1)
                uses = R(0) + R(1)
            elif mn.startswith("v_cmp"):
                defs = R(0)
                uses = R(1) + R(2)
            elif mn == "v_nop":
                pass
            else:
                defs = R(0)
                for i in range(1, len(o)):
                    uses += R(i)
                if mn in ("v_fmac_f32",) or mn.endswith("_dpp"):
                    uses += R(0)
        elif mn.startswith("ds_"):
            self.cls = "ds"
            if "read" in mn or "swizzle" in mn or "bpermute" in mn:
                defs = R(0)
                for i in range(1, len(o)):
                    uses += R(i)
            else:
                for i in range(len(o)):
                    uses += R(i)
        elif mn.startswith("buffer_") or mn.startswith("global_"):
            self.cls = "vmem"
            if mn in ("buffer_wbl2", "buffer_inv"):
                pass
            elif "load" in mn and "lds" not in self.mods:
                defs = R(0)
                for i in range(1, len(o)):
                    uses += R(i)
            else:
                for i in range(len(o)):
                    uses += R(i)
                if "lds" in self.mods:
                    uses.append(("s", 124))
                if "atomic" in mn and "sc0" in self.mods:
                    defs = R(0)
        elif mn.startswith("s_load") or mn in ("s_memtime", "s_memrealtime"):
            self.cls = "smem"
            defs = R(0)
            if len(o) > 1:
                uses = R(1)
        else:
            self.cls = "salu"
            if mn == "s_nop":
                self.ws = o[0].val + 1
            elif mn.startswith("s_cmp") or mn.startswith("s_bitcmp"):
                uses = R(0) + R(1)
            elif mn.startswith("s_cbranch") or mn in ("s_branch", "s_barrier", "s_waitcnt", "s_endpgm", "s_setprio", "s_sleep"):
                pass
            else:
                defs = R(0)
                for i in range(1, len(o)):
                    uses += R(i)
                if mn in ("s_and_saveexec_b64", "s_or_saveexec_b64"):
                    defs += [("s", 126), ("s", 127)]
                if mn in ("s_addk_i32",):
                    uses += R(0)
        self.defs, self.uses = defs, uses
        self.vdefs = [r[1] for r in defs if r[0] == "v"]
        self.vuses = [r[1] for r in uses if r[0] == "v"]
        self.sdefs = [r[1] for r in defs if r[0] == "s"]
        self.suses = [r[1] for r in uses if r[0] == "s"]


def parse(asm):
    ins, labels = [], {}
    intext = False
    for ln, raw in enumerate(asm.split("\n"), 1):
        s = raw.split(";")[0].split("//")[0].strip()
        if not s:
            continue
        if s.startswith(".text"):
            intext = True
            continue
        if s.startswith(".section"):
            intext = False
            continue
        if not intext:
            continue
        if s.endswith(":"):
            labels[s[:-1]] = len(ins)
            continue
        if s.startswith("."):
            continue
        ins.append(Ins(s, ln))
    return ins, labels


class Mem:
    def __init__(self):
        self.bufs = []
        self.next = 0x7F0000000000

    def add(self, name, arr):
        arr = np.ascontiguousarray(arr).view(np.uint8).reshape(-1)
        base = self.next
        self.next += (len(arr) + 0xFFFFFFF) & ~0xFFFFFFF
        self.next += 0x10000000
        self.bufs.append((base, arr, name))
        return base

    def find(self, lo, hi):
        for base, arr, name in self.bufs:
            if base <= lo and hi <= base + len(arr):
                return base, arr, name
        raise SimError("global access outside any buffer: %x..%x" % (lo, hi))


class Wave:
    def __init__(self, wid):
        self.wid = wid
        self.v = np.zeros((512, 64), dtype=U32)
        self.v[:] = 0x7FC0DEAD
        self.s = [0xDEADBEEF] * 128
        self.s[126] = self.s[127] = 0xFFFFFFFF
        self.scc = 0
        self.pc = 0
        self.done = False
        self.t = 0
        self.vq = []
        self.lq = []
        self.pend = {}
        self.wr_valu = [-99] * 512
        self.wr_trans = [-99] * 512
        self.wr_mfma = [-99] * 512
        self.mfma_dtuple = {}
        self.rd_mfma_c = [-99] * 512
        self.st_data = [-99] * 512
        self.swr_valu = [-99] * 128
        self.m0_t = -99
        self.counts = {}


class Sim:
    def __init__(self, asm, mem=None, lds_bytes=163840, data=True, autowait=None, verbose=False):
        self.ins, self.labels = parse(asm)
        self.mem = mem
        self.data = data
        self.lds_bytes = lds_bytes
        self.autowait = autowait
        self.autonop = {}
        self.errors = {}
        self.info = {}
        self.verbose = verbose
        self.hook = None
        self.bank_done = set()

    def err(self, w, i, msg):
        k = (i.line, msg.split(":")[0])
        if k not in self.errors:
            self.errors[k] = "line %d wave %d: %s  || %s" % (i.line, w.wid, msg, i.text)

    def rd(self, w, o, k=0):
        if o.kind == "v":
            x = w.v[o.idx + k]
        elif o.kind == "s":
            x = np.full(64, w.s[o.idx + k], dtype=U32)
        else:
            x = np.full(64, o.val & 0xFFFFFFFF, dtype=U32)
        return x

    def rdf(self, w, o, k=0):
        x = self.rd(w, o, k).view(F32)
        if o.abs:
            x = np.abs(x)
        if o.neg:
            x = -x
        return x

    def srd(self, w, o, k=0):
        if o.kind == "s":
            return w.s[o.idx + k]
        if o.kind == "c":
            return (o.val >> (32 * k)) & 0xFFFFFFFF
        raise SimError("bad scalar operand")

    def s64(self, w, o):
        return self.srd(w, o, 0) | (self.srd(w, o, 1) << 32)

    def execmask(self, w):
        e = w.s[126] | (w.s[127] << 32)
        if e == 0xFFFFFFFFFFFFFFFF:
            return None
        return np.array([(e >> i) & 1 for i in range(64)], dtype=bool)

    def wr(self, w, o, x, k=0):
        x = np.asarray(x)
        if x.dtype == F32:
            x = x.view(U32)
        elif x.dtype != U32:
            x = (x.astype(np.int64) & 0xFFFFFFFF).astype(U32)
        m = self.execmask(w)
        if m is None:
            w.v[o.idx + k] = x
        else:
            w.v[o.idx + k] = np.where(m, x, w.v[o.idx + k])

    def wmask(self, w, o, b):
        m = self.execmask(w)
        if m is not None:
            b = b & m
        e = 0
        for i in np.nonzero(b)[0]:
            e |= 1 << int(i)
        w.s[o.idx] = e & 0xFFFFFFFF
        w.s[o.idx + 1] = e >> 32

    def rmask(self, w, o):
        e = w.s[o.idx] | (w.s[o.idx + 1] << 32)
        return np.array([(e >> i) & 1 for i in range(64)], dtype=bool)

    def retire(self, w, q, n):
        while len(q) > n:
            oid, regs = q.pop(0)
            self.done_epoch[oid] = self.epoch
            for r in regs:
                if w.pend.get(r, (None, None))[1] == oid:
                    del w.pend[r]

    def newop(self, w, kind, regs):
        oid = len(self.done_epoch)
        self.done_epoch.append(1 << 30)
        self.op_wave.append(w.wid)
        self.op_isds.append(kind == "lg")
        q = w.vq if kind == "vm" else w.lq
        q.append((oid, regs))
        for r in regs:
            w.pend[r] = (kind, oid)
        if kind == "vm" and len(q) > 63:
            self.retire(w, q, 63)
            self.info["vmcnt>63"] = self.info.get("vmcnt>63", 0) + 1
        return oid

    def check_pending(self, w, i, ii):
        if self.autowait is not None and ii in self.autowait:
            aw = self.autowait[ii]
            if "vmcnt" in aw:
                self.retire(w, w.vq, aw["vmcnt"])
            if "lgkmcnt" in aw:
                self.retire(w, w.lq, aw["lgkmcnt"])
            w.t += 1
        if not w.pend:
            return
        for r in i.uses + i.defs:
            p = w.pend.get(r)
            if p is None:
                continue
            kind, oid = p
            q = w.vq if kind == "vm" else w.lq
            if r in i.defs and r not in i.uses and ((kind == "lg" and i.cls == "ds") or (kind == "vm" and i.cls == "vmem")):
                continue
            pos = [x[0] for x in q].index(oid)
            n = len(q) - 1 - pos
            if kind == "lg":
                if any(self.op_smem.get(x[0]) for x in q):
                    n = 0
                n = min(n, 15)
            if self.autowait is not None:
                aw = self.autowait.setdefault(ii, {})
                key = "vmcnt" if kind == "vm" else "lgkmcnt"
                aw[key] = min(aw.get(key, 99), n)
            else:
                self.err(w, i, "missing waitcnt: %s%d needs %s(%d)" % (r[0], r[1], kind, n))
            self.retire(w, q, n)

    def hazards(self, w, i, ii):
        have = self.autonop.get(ii, 0)
        w.t += have
        t = w.t
        cls = i.cls

        def need(arr, regs, n, what):
            for r in regs:
                d = t - arr[r] - 1
                if d < n:
                    if self.autowait is not None:
                        self.autonop[ii] = max(self.autonop.get(ii, 0), have + n - d)
                    else:
                        self.err(w, i, "hazard %s: reg %d distance %d < %d" % (what, r, d, n))
                        return

        if cls == "mfma":
            need(w.wr_valu, i.vuses, 2, "valu->mfma")
            need(w.wr_mfma, i.abuse, 8, "mfmaD->mfmaAB")
            if i.cuse:
                tup = (i.cuse[0], len(i.cuse), i.mn)
                for r in i.cuse:
                    if t - w.wr_mfma[r] - 1 < 6 and w.mfma_dtuple.get(r) != tup:
                        self.err(w, i, "hazard mfmaD->mfmaC overlap: reg %d" % r)
            if i.vdefs[0] not in i.cuse:
                need(w.wr_mfma, i.vdefs, 6, "mfmaD->mfmaD waw")
        elif cls in ("valu", "trans"):
            need(w.wr_mfma, i.vuses + i.vdefs, 8, "mfmaD->valu")
            need(w.rd_mfma_c, i.vdefs, 3, "mfmaC war valu")
            need(w.st_data, i.vdefs, 2, "store data war")
            if cls == "valu":
                need(w.wr_trans, i.vuses, 1, "trans->valu")
            if i.mn.startswith("v_permlane") or i.mn.endswith("_dpp"):
                need(w.wr_valu, i.vuses, 2, "valu->permlane/dpp")
            if i.mn in ("v_readfirstlane_b32", "v_readlane_b32"):
                need(w.wr_valu, i.vuses, 1, "valu->readlane")
            need(w.swr_valu, i.suses, 2, "valu sgpr->valu")
        elif cls in ("ds", "vmem"):
            need(w.wr_mfma, i.vuses + i.vdefs, 8, "mfmaD->mem")
            need(w.wr_trans, i.vuses, 1, "trans->mem")
            need(w.st_data, i.vdefs, 1, "store data war")
            if cls == "vmem":
                need(w.swr_valu, i.suses, 5, "valu sgpr->vmem")
                if "lds" in i.mods and t - w.m0_t - 1 < 1:
                    self.err(w, i, "hazard m0->dma")
        elif cls == "salu":
            need(w.swr_valu, i.suses, 1, "valu sgpr->salu")
        if cls == "mfma":
            tup = (i.vdefs[0], len(i.vdefs), i.mn)
            for r in i.vdefs:
                w.wr_mfma[r] = t
                w.mfma_dtuple[r] = tup
            for r in i.cuse:
                w.rd_mfma_c[r] = t
        elif cls in ("valu", "trans"):
            for r in i.vdefs:
                w.wr_valu[r] = t
                if cls == "trans":
                    w.wr_trans[r] = t
            for r in i.sdefs:
                w.swr_valu[r] = t
        elif cls == "vmem" and "store" in i.mn and (i.mn.endswith("x4") or i.mn.endswith("x3")):
            for r in i.ops[0].regs():
                w.st_data[r[1]] = t
        elif cls == "salu" and 124 in i.sdefs:
            w.m0_t = t
        w.t += i.ws

    def lds_access(self, w, i, addrs, nbytes, oid, write, dma=False):
        m = self.execmask(w)
        if m is not None:
            addrs = addrs[m]
        if len(addrs) == 0:
            return None
        if int(addrs.max()) + nbytes > self.lds_bytes:
            self.err(w, i, "LDS out of range: %d" % int(addrs.max()))
            raise SimError("LDS OOR line %d" % i.line)
        if (addrs % min(nbytes, 16)).any():
            self.err(w, i, "LDS misaligned")
        g = ((addrs[:, None] >> 2) + np.arange(nbytes // 4)[None, :]).reshape(-1)
        de = self.done_epoch
        for o in np.unique(self.lw[g]):
            if o < 0:
                if not write:
                    self.info["lds uninit read line %d" % i.line] = 1
                continue
            if self.op_wave[o] == w.wid:
                if self.op_isds[o] and not dma:
                    continue
                if de[o] > self.epoch:
                    self.err(w, i, "LDS race own-wave %s: earlier write not waited" % ("WAW" if write else "RAW"))
            elif de[o] >= self.epoch:
                self.err(w, i, "LDS race %s: write by wave %d not complete before barrier" % ("WAW" if write else "RAW", self.op_wave[o]))
        if write:
            for ow in range(self.nw):
                for o in np.unique(self.lr[ow][g]):
                    if o < 0:
                        continue
                    if ow == w.wid:
                        if dma and de[o] > self.epoch:
                            self.err(w, i, "LDS race own-wave WAR: read not waited")
                    elif de[o] >= self.epoch:
                        self.err(w, i, "LDS race WAR: read by wave %d not complete before barrier" % ow)
            self.lw[g] = oid
        else:
            self.lr[w.wid][g] = oid
        return g

    def bank_check(self, i, addrs, kind):
        if kind == "b128":
            groups = [[0, 1, 2, 3, 12, 13, 14, 15, 20, 21, 22, 23, 24, 25, 26, 27], [4, 5, 6, 7, 8, 9, 10, 11, 16, 17, 18, 19, 28, 29, 30, 31]]
            groups += [[x + 32 for x in g] for g in groups]
            n = 4
        else:
            groups = [list(range(32)), list(range(32, 64))]
            n = 2
        for g in groups:
            a = np.unique(addrs[g])
            b = (((a[:, None] >> 2) + np.arange(n)[None, :]) & 63).reshape(-1)
            c = np.bincount(b.astype(np.int64), minlength=64).max()
            if c > 1:
                self.info["bank conflict x%d line %d %s" % (c, i.line, i.mn)] = 1
                return

    def buf_addr(self, w, i, vo, srd, so, nbytes):
        base = w.s[srd.idx] | ((w.s[srd.idx + 1] & 0xFFFF) << 32)
        nrec = w.s[srd.idx + 2]
        if w.s[srd.idx + 3] != 0x20000:
            self.err(w, i, "bad SRD word3")
        off = np.full(64, self.srd(w, so) + i.mods.get("offset", 0), dtype=np.int64)
        if "offen" in i.mods:
            off += w.v[vo.idx].astype(np.int64)
        ok = off + nbytes <= nrec
        m = self.execmask(w)
        if m is not None:
            act = m
        else:
            act = np.ones(64, dtype=bool)
        if (act & ~ok).any():
            self.info["SRD range drop line %d" % i.line] = 1
        ok &= act
        if (off[ok] % min(nbytes, 4)).any():
            self.err(w, i, "global misaligned")
        return base, off, ok, act

    def gload(self, base, off, ok, nbytes):
        out = np.zeros((64, nbytes), dtype=np.uint8)
        if ok.any():
            lo = base + int(off[ok].min())
            hi = base + int(off[ok].max()) + nbytes
            b, arr, name = self.mem.find(lo, hi)
            if self.data:
                idx = (base - b + off[ok])[:, None] + np.arange(nbytes)[None, :]
                out[ok] = arr[idx]
        return out.view(U32)

    def gstore(self, base, off, ok, data):
        nbytes = data.shape[1] * 4
        if ok.any():
            lo = base + int(off[ok].min())
            hi = base + int(off[ok].max()) + nbytes
            b, arr, name = self.mem.find(lo, hi)
            if name.startswith("in"):
                raise SimError("store to input " + name)
            if self.data:
                idx = (base - b + off[ok])[:, None] + np.arange(nbytes)[None, :]
                arr[idx] = np.ascontiguousarray(data[ok]).view(np.uint8).reshape(-1, nbytes)

    def frag(self, w, o):
        x = w.v[o.idx:o.idx + o.n]
        lo = (x << 16).view(F32)
        hi = (x & 0xFFFF0000).view(F32)
        e = np.stack([lo, hi], axis=1).reshape(2 * o.n, 64)
        return e.reshape(2 * o.n, 4, 16).transpose(2, 1, 0).reshape(16, 8 * o.n)

    def step(self, w):
        ii = w.pc
        i = self.ins[ii]
        self.check_pending(w, i, ii)
        self.hazards(w, i, ii)
        w.counts[i.cls] = w.counts.get(i.cls, 0) + 1
        w.pc += 1
        mn, o = i.mn, i.ops
        cls = i.cls
        if cls == "mfma":
            if not self.data:
                return
            if mn != "v_mfma_f32_16x16x32_bf16":
                raise SimError("unsupported " + mn)
            A = self.frag(w, o[1])
            B = self.frag(w, o[2])
            with np.errstate(all="ignore"):
                D = A @ B.T
                D = D.reshape(4, 4, 16).transpose(1, 0, 2).reshape(4, 64)
                if o[3].kind == "v":
                    D = D + w.v[o[3].idx:o[3].idx + 4].view(F32)
                elif o[3].val != 0:
                    raise SimError("const C")
            w.v[o[0].idx:o[0].idx + 4] = D.astype(F32).view(U32)
            return
        if cls in ("valu", "trans"):
            self.valu(w, i)
            return
        if cls == "ds":
            self.dsop(w, i)
            return
        if cls == "vmem":
            self.vmem(w, i)
            return
        if cls == "smem":
            oid = self.newop(w, "lg", i.defs)
            self.op_smem[oid] = True
            if mn.startswith("s_load"):
                a = self.s64(w, o[1]) + o[2].val
                b, arr, _ = self.mem.find(a, a + 4 * o[0].n)
                vals = arr[a - b:a - b + 4 * o[0].n].view(U32)
                for k in range(o[0].n):
                    w.s[o[0].idx + k] = int(vals[k])
            else:
                w.s[o[0].idx] = w.t & 0xFFFFFFFF
                w.s[o[0].idx + 1] = 0
            return
        return self.salu(w, i)

    def salu(self, w, i):
        mn, o = i.mn, i.ops
        S = lambda k: self.srd(w, o[k])
        M = 0xFFFFFFFF
        sg = lambda x: x - (1 << 32) if x >> 31 else x

        def st(x, scc=None):
            w.s[o[0].idx] = x & M
            if scc is not None:
                w.scc = int(scc)

        if mn == "s_waitcnt":
            if "vmcnt" in i.mods:
                self.retire(w, w.vq, i.mods["vmcnt"])
            if "lgkmcnt" in i.mods:
                n = i.mods["lgkmcnt"]
                if n == 0 or not any(self.op_smem.get(x[0]) for x in w.lq):
                    self.retire(w, w.lq, n)
        elif mn == "s_barrier":
            return "barrier"
        elif mn == "s_endpgm":
            self.retire(w, w.vq, 0)
            self.retire(w, w.lq, 0)
            w.done = True
            return "end"
        elif mn in ("s_nop", "s_setprio", "s_sleep"):
            pass
        elif mn == "s_mov_b32":
            st(S(1))
        elif mn == "s_movk_i32":
            st(S(1))
        elif mn == "s_getreg_b32":
            st(0)
        elif mn == "s_mov_b64":
            a, b = self.srd(w, o[1], 0), self.srd(w, o[1], 1)
            w.s[o[0].idx], w.s[o[0].idx + 1] = a, b
        elif mn == "s_add_u32":
            x = S(1) + S(2)
            st(x, x >> 32)
        elif mn == "s_addc_u32":
            x = S(1) + S(2) + w.scc
            st(x, x >> 32)
        elif mn == "s_sub_u32":
            x = S(1) - S(2)
            st(x, x < 0)
        elif mn == "s_subb_u32":
            x = S(1) - S(2) - w.scc
            st(x, x < 0)
        elif mn == "s_add_i32":
            st(S(1) + S(2), 0)
        elif mn == "s_sub_i32":
            st(S(1) - S(2), 0)
        elif mn == "s_mul_i32":
            st(S(1) * S(2))
        elif mn == "s_lshl_b32":
            x = (S(1) << (S(2) & 31)) & M
            st(x, x != 0)
        elif mn == "s_lshr_b32":
            x = S(1) >> (S(2) & 31)
            st(x, x != 0)
        elif mn == "s_and_b32":
            x = S(1) & S(2)
            st(x, x != 0)
        elif mn == "s_or_b32":
            x = S(1) | S(2)
            st(x, x != 0)
        elif mn == "s_xor_b32":
            x = S(1) ^ S(2)
            st(x, x != 0)
        elif mn == "s_min_u32":
            st(min(S(1), S(2)), S(1) < S(2))
        elif mn == "s_max_u32":
            st(max(S(1), S(2)), S(1) > S(2))
        elif mn == "s_max_i32":
            st(max(sg(S(1)), sg(S(2))), sg(S(1)) > sg(S(2)))
        elif mn == "s_bfe_u32":
            x = (S(1) >> (S(2) & 31)) & ((1 << ((S(2) >> 16) & 0x7F)) - 1)
            st(x, x != 0)
        elif mn == "s_cselect_b32":
            st(S(1) if w.scc else S(2))
        elif mn in ("s_or_b64", "s_and_b64", "s_andn2_b64", "s_xor_b64"):
            a, b = self.s64(w, o[1]), self.s64(w, o[2])
            x = {"s_or_b64": a | b, "s_and_b64": a & b, "s_andn2_b64": a & ~b, "s_xor_b64": a ^ b}[mn]
            w.s[o[0].idx], w.s[o[0].idx + 1] = x & M, (x >> 32) & M
            w.scc = int(x != 0)
        elif mn == "s_and_saveexec_b64":
            e = w.s[126] | (w.s[127] << 32)
            x = e & self.s64(w, o[1])
            w.s[o[0].idx], w.s[o[0].idx + 1] = e & M, e >> 32
            w.s[126], w.s[127] = x & M, x >> 32
            w.scc = int(x != 0)
        elif mn.startswith("s_cmp_"):
            c, ty = mn.split("_")[2:4]
            if ty == "u64":
                a, b = self.s64(w, o[0]), self.s64(w, o[1])
            else:
                a, b = S(0), S(1)
            if ty == "i32":
                a, b = sg(a), sg(b)
            w.scc = int({"eq": a == b, "lg": a != b, "lt": a < b, "le": a <= b, "gt": a > b, "ge": a >= b}[c])
        elif mn == "s_bitcmp1_b32":
            w.scc = (S(0) >> (S(1) & 31)) & 1
        elif mn == "s_bitcmp0_b32":
            w.scc = 1 - ((S(0) >> (S(1) & 31)) & 1)
        elif mn == "s_branch":
            w.pc = self.labels[o[0].val]
        elif mn.startswith("s_cbranch"):
            c = mn[10:]
            vcc = w.s[106] | w.s[107]
            ex = w.s[126] | w.s[127]
            if c in ("vccz", "vccnz") and w.t - 1 - max(w.swr_valu[106], w.swr_valu[107]) - 1 < 1:
                pass
            if {"scc0": not w.scc, "scc1": w.scc, "vccz": not vcc, "vccnz": vcc, "execz": not ex, "execnz": ex}[c]:
                w.pc = self.labels[o[0].val]
        else:
            raise SimError("unsupported salu " + i.text)

    def valu(self, w, i):
        mn, o = i.mn, i.ops
        R = lambda k: self.rd(w, o[k])
        L = lambda k: self.rd(w, o[k]).astype(np.int64)
        Fv = lambda k: self.rdf(w, o[k])
        W = lambda x: self.wr(w, o[0], x)
        with np.errstate(all="ignore"):
            if mn in ("v_mov_b32", "v_accvgpr_read_b32", "v_accvgpr_write_b32", "v_accvgpr_mov_b32"):
                W(R(1).copy())
            elif mn == "v_nop":
                pass
            elif mn == "v_exp_f32":
                if self.data:
                    W(np.exp2(Fv(1)).astype(F32))
            elif mn == "v_cvt_pk_bf16_f32":
                if self.data:
                    W(bf16_round(Fv(1)) | (bf16_round(Fv(2)) << 16))
            elif mn == "v_add_u32":
                W(L(1) + L(2))
            elif mn == "v_sub_u32":
                W(L(1) - L(2))
            elif mn == "v_subrev_u32":
                W(L(2) - L(1))
            elif mn == "v_lshlrev_b32":
                W(L(2) << (L(1) & 31))
            elif mn == "v_lshrrev_b32":
                W(L(2) >> (L(1) & 31))
            elif mn == "v_and_b32":
                W(R(1) & R(2))
            elif mn == "v_or_b32":
                W(R(1) | R(2))
            elif mn == "v_xor_b32":
                W(R(1) ^ R(2))
            elif mn == "v_lshl_add_u32":
                W((L(1) << (L(2) & 31)) + L(3))
            elif mn == "v_lshl_or_b32":
                W((L(1) << (L(2) & 31)) | L(3))
            elif mn == "v_add_lshl_u32":
                W(((L(1) + L(2)) & 0xFFFFFFFF) << (L(3) & 31))
            elif mn == "v_and_or_b32":
                W((R(1) & R(2)) | R(3))
            elif mn == "v_add3_u32":
                W(L(1) + L(2) + L(3))
            elif mn == "v_or3_b32":
                W(R(1) | R(2) | R(3))
            elif mn == "v_mul_u32_u24":
                W((L(1) & 0xFFFFFF) * (L(2) & 0xFFFFFF))
            elif mn == "v_mad_u32_u24":
                W((L(1) & 0xFFFFFF) * (L(2) & 0xFFFFFF) + L(3))
            elif mn == "v_mul_lo_u32":
                W((R(1).astype(np.uint64) * R(2).astype(np.uint64)).astype(U32))
            elif mn == "v_bfe_u32":
                W((L(1) >> (L(2) & 31)) & ((1 << (L(3) & 31)) - 1))
            elif mn == "v_min_u32":
                W(np.minimum(L(1), L(2)))
            elif mn == "v_max_u32":
                W(np.maximum(L(1), L(2)))
            elif mn == "v_readfirstlane_b32":
                m = self.execmask(w)
                l = 0 if m is None or not m.any() else int(np.nonzero(m)[0][0])
                w.s[o[0].idx] = int(R(1)[l])
            elif mn == "v_readlane_b32":
                w.s[o[0].idx] = int(R(1)[self.srd(w, o[2]) & 63])
            elif mn == "v_cndmask_b32":
                W(np.where(self.rmask(w, o[3]), R(2), R(1)))
            elif mn.startswith("v_cmp_"):
                c, ty = mn.split("_")[2:4]
                if ty == "f32":
                    a, b = Fv(1), Fv(2)
                elif ty == "i32":
                    a, b = R(1).view(np.int32), R(2).view(np.int32)
                else:
                    a, b = R(1), R(2)
                r = {"eq": a == b, "ne": a != b, "lt": a < b, "le": a <= b, "gt": a > b, "ge": a >= b,
                     "nle": ~(a <= b), "nge": ~(a >= b), "nlt": ~(a < b), "ngt": ~(a > b), "neq": ~(a == b)}[c]
                if not self.data and ty == "f32":
                    r = np.full(64, bool(self.force_fcmp))
                self.wmask(w, o[0], r)
            elif mn == "v_add_f32":
                W(Fv(1) + Fv(2))
            elif mn == "v_sub_f32":
                W(Fv(1) - Fv(2))
            elif mn == "v_subrev_f32":
                W(Fv(2) - Fv(1))
            elif mn == "v_mul_f32":
                W(Fv(1) * Fv(2))
            elif mn == "v_fma_f32":
                W((Fv(1).astype(np.float64) * Fv(2) + Fv(3)).astype(F32))
            elif mn == "v_fmac_f32":
                W((Fv(1).astype(np.float64) * Fv(2) + Fv(0)).astype(F32))
            elif mn == "v_max_f32":
                W(np.fmax(Fv(1), Fv(2)))
            elif mn == "v_min_f32":
                W(np.fmin(Fv(1), Fv(2)))
            elif mn == "v_max3_f32":
                W(np.fmax(np.fmax(Fv(1), Fv(2)), Fv(3)))
            elif mn == "v_rcp_f32":
                W((F32(1) / Fv(1)).astype(F32))
            elif mn in ("v_pk_mul_f32", "v_pk_add_f32", "v_pk_fma_f32"):
                ns = 3 if mn == "v_pk_fma_f32" else 2
                sel = eval(i.mods.get("op_sel", "[0,0,0]"))
                selh = eval(i.mods.get("op_sel_hi", "[1,1,1]"))
                res = []
                for s_ in (sel, selh):
                    x = [self.rdf(w, o[k + 1], s_[k] if o[k + 1].kind != "c" else 0) for k in range(ns)]
                    if mn == "v_pk_mul_f32":
                        res.append(x[0] * x[1])
                    elif mn == "v_pk_add_f32":
                        res.append(x[0] + x[1])
                    else:
                        res.append((x[0].astype(np.float64) * x[1] + x[2]).astype(F32))
                self.wr(w, o[0], res[0], 0)
                self.wr(w, o[0], res[1], 1)
            elif mn == "v_permlane32_swap_b32":
                a, b = w.v[o[0].idx], w.v[o[1].idx]
                t = a[32:].copy()
                a[32:] = b[:32]
                b[:32] = t
            elif mn == "v_permlane16_swap_b32":
                a, b = w.v[o[0].idx], w.v[o[1].idx]
                for r in (0, 32):
                    t = a[r + 16:r + 32].copy()
                    a[r + 16:r + 32] = b[r:r + 16]
                    b[r:r + 16] = t
            elif mn in ("v_add_f32_dpp", "v_max_f32_dpp", "v_mov_b32_dpp"):
                src = R(1)
                if "row_ror" in i.mods:
                    n = i.mods["row_ror"]
                    idx = (LANES & 48) | ((LANES + 16 - n) & 15)
                elif "quad_perm" in i.mods:
                    p = np.array(eval(i.mods["quad_perm"]), dtype=U32)
                    idx = (LANES & 60) | p[LANES & 3]
                else:
                    raise SimError("dpp mode")
                src = src[idx]
                if mn == "v_mov_b32_dpp":
                    W(src)
                elif mn == "v_add_f32_dpp":
                    W(src.view(F32) + Fv(2))
                else:
                    W(np.fmax(src.view(F32), Fv(2)))
            else:
                raise SimError("unsupported valu " + i.text)

    def dsop(self, w, i):
        mn, o = i.mn, i.ops
        off = i.mods.get("offset", 0)
        lds32 = self.lds.view(U32)
        m = self.execmask(w)
        if mn.startswith("ds_read"):
            n = o[0].n
            addrs = w.v[o[1].idx].astype(np.int64) + off
            oid = self.newop(w, "lg", i.defs)
            g = self.lds_access(w, i, addrs, 4 * n, oid, False)
            if m is None and n >= 2 and i.line not in self.bank_done:
                self.bank_done.add(i.line)
                self.bank_check(i, addrs, "b128" if n == 4 else "b64")
            if not self.data and not (mn == "ds_read_b32"):
                return
            if mn == "ds_read_b64_tr_b16":
                if m is not None:
                    self.err(w, i, "tr read with partial exec")
                d = lds32[g].reshape(64, 2).copy().view(np.uint16).reshape(4, 4, 4, 4)
                t = d.transpose(0, 2, 3, 1).reshape(64, 4)
                t = np.ascontiguousarray(t).view(U32)
                w.v[o[0].idx] = t[:, 0]
                w.v[o[0].idx + 1] = t[:, 1]
            elif g is not None:
                d = lds32[g].reshape(-1, n)
                for k in range(n):
                    if m is None:
                        w.v[o[0].idx + k] = d[:, k]
                    else:
                        w.v[o[0].idx + k][m] = d[:, k]
        elif mn.startswith("ds_write"):
            n = o[1].n
            addrs = w.v[o[0].idx].astype(np.int64) + off
            oid = self.newop(w, "lg", [])
            g = self.lds_access(w, i, addrs, 4 * n, oid, True)
            if g is not None:
                d = w.v[o[1].idx:o[1].idx + n].T
                if m is not None:
                    d = d[m]
                lds32[g] = d.reshape(-1)
        else:
            raise SimError("unsupported ds " + i.text)

    def vmem(self, w, i):
        mn, o = i.mn, i.ops
        if mn in ("buffer_wbl2", "buffer_inv"):
            self.newop(w, "vm", [])
            return
        n = {"dword": 1, "dwordx2": 2, "dwordx4": 4, "add": 1}[mn.split("_")[-1]]
        if "lds" in i.mods:
            base, off, ok, act = self.buf_addr(w, i, o[0], o[1], o[2], 4 * n)
            d = self.gload(base, off, ok, 4 * n)
            oid = self.newop(w, "vm", [])
            addrs = (w.s[124] & 0x3FFFC) + i.mods.get("offset", 0) + LANES.astype(np.int64) * (4 * n)
            g = self.lds_access(w, i, addrs, 4 * n, oid, True, dma=True)
            if g is not None and self.data:
                self.lds.view(U32)[g] = d[act].reshape(-1)
        elif "load" in mn:
            base, off, ok, act = self.buf_addr(w, i, o[1], o[2], o[3], 4 * n)
            sv = self.data
            if n == 1:
                self.data = True
            d = self.gload(base, off, ok, 4 * n)
            self.data = sv
            self.newop(w, "vm", i.defs)
            for k in range(n):
                self.wr(w, o[0], d[:, k].copy(), k)
        elif "store" in mn:
            base, off, ok, act = self.buf_addr(w, i, o[1], o[2], o[3], 4 * n)
            self.gstore(base, off, ok, w.v[o[0].idx:o[0].idx + n].T)
            self.newop(w, "vm", [])
        elif "atomic_add" in mn:
            base, off, ok, act = self.buf_addr(w, i, o[1], o[2], o[3], 4)
            old = np.zeros(64, dtype=U32)
            for l in np.nonzero(ok)[0]:
                a = base + int(off[l])
                b, arr, _ = self.mem.find(a, a + 4)
                x = arr[a - b:a - b + 4].view(U32)
                old[l] = x[0]
                x[0] = (int(x[0]) + int(w.v[o[0].idx][l])) & 0xFFFFFFFF
            self.newop(w, "vm", i.defs)
            if i.defs:
                self.wr(w, o[0], old)
        else:
            raise SimError("unsupported vmem " + i.text)

    def run_wg(self, label, wg, kernarg_addr, nw=4, force_fcmp=False, maxsteps=3000000):
        self.nw = nw
        self.force_fcmp = force_fcmp
        self.lds = np.zeros(self.lds_bytes, dtype=np.uint8)
        self.lds.view(U32)[:] = 0x7FC0BEEF
        self.lw = np.full(self.lds_bytes // 4, -1, dtype=np.int64)
        self.lr = [np.full(self.lds_bytes // 4, -1, dtype=np.int64) for _ in range(nw)]
        self.done_epoch, self.op_wave, self.op_isds, self.op_smem = [], [], [], {}
        self.epoch = 0
        waves = []
        for k in range(nw):
            w = Wave(k)
            w.pc = self.labels[label]
            w.s[0], w.s[1], w.s[2] = kernarg_addr & 0xFFFFFFFF, kernarg_addr >> 32, wg
            w.v[0] = LANES + 64 * k
            waves.append(w)
        self.waves = waves
        steps = 0
        while True:
            res = []
            for w in waves:
                if w.done:
                    continue
                while True:
                    steps += 1
                    if steps > maxsteps:
                        raise SimError("too many steps (hang?) at line %d" % self.ins[w.pc].line)
                    r = self.step(w)
                    if r:
                        res.append(r)
                        break
            if all(w.done for w in waves):
                break
            if "end" in res and "barrier" in res:
                raise SimError("barrier count mismatch between waves")
            self.epoch += 1
        return waves

    def report(self):
        for k in sorted(self.errors):
            print("ERROR", self.errors[k])
        for k in sorted(self.info):
            print("info:", k)
        return len(self.errors)
```

```python
import sys, time, numpy as np
import sim, gen, ref
asm = open(sys.argv[1] if len(sys.argv) > 1 and sys.argv[1].endswith(".s") else "../" + gen.NAME + ".s").read()
which = [a for a in sys.argv[1:] if not a.endswith(".s")] or ["k1", "k2", "k3"]
qs = 40.0 if "big" in which else 1.0
d = ref.make_inputs(0, qs)
mem = sim.Mem(); ptr = {}
ws = np.full((gen.WS_G + 8192) // 2, 0x7fc1, dtype=np.uint16)
out = np.full(2048 * 1024, 0x7fc1, dtype=np.uint16)
for n in gen.KARG:
    if n == "ws": ptr[n] = mem.add("ws", ws)
    elif n == "out": ptr[n] = mem.add("out", out)
    elif n == "dbg": ptr[n] = mem.add("dbg", np.zeros(64, dtype=np.uint32))
    else: ptr[n] = mem.add("in_" + n, ref.bits(d[n]))
ka = np.zeros(13, dtype=np.uint64)
for n in gen.KARG: ka[gen.KARG[n] // 8] = ptr[n]
kaddr = mem.add("karg", ka)
s = sim.Sim(asm, mem)
def cmp(name, got, exp):
    err = np.abs(got - exp); den = np.abs(exp).max()
    print("%s: max err %.4g (max ref %.4g) rel_l2 %.3g nan %d" % (name, np.nanmax(err) if not np.isnan(err).all() else np.nan, den, np.sqrt(np.nansum(err**2) / (exp**2).sum()), np.isnan(got).sum()))
idx = 13; h = (idx & 7) * 4 + ((idx >> 3) & 3)
K, V = ref.kv_head(d, h)
kvl = ref.kv_layout(K, V)
kvw = ws[h * gen.HS // 2:(h + 1) * gen.HS // 2].reshape(66, 16, 64, 8)
if "k1" in which:
    for j in (0, 7):
        s.run_wg("kv_kernel", j * 32 + idx, kaddr)
        got = sim.bf16_to_f32(kvw)
        cmp("K j=%d" % j, got[8*j:8*j+8, :8], kvl[8*j:8*j+8, :8])
        cmp("V j=%d" % j, got[8*j+1:8*j+9, 8:], kvl[8*j+1:8*j+9, 8:])
        wg = j * 32 + idx
        cmp("g", ws[gen.WS_G // 2:].view(np.float32)[8*wg:8*wg+8], ref.gate(d)[8*wg:8*wg+8])
kvw[:] = ref.bits(kvl)
cw = ws[gen.WS_CTX // 2:gen.WS_CTX // 2 + 16 * gen.CTX_RB // 2].reshape(16, 160, 8, 64, 8)
if "k2" in which:
    ctx = ref.attn_head(d, h, K, V); ob = ref.b_head(d, h)
    for j in (0, 1, 6, 7):
        t0 = time.time()
        wv = s.run_wg("att_kernel", j * 32 + idx, kaddr)
        for rb_ in (j, 15 - j):
            got = sim.bf16_to_f32(cw[rb_])
            e = np.stack([ref.ctx_frag(ob, rb_ * 8 + rt, 0) for rt in range(8)])
            cmp("oB j=%d rb=%d" % (j, rb_), got[h], e)
            e = np.stack([np.stack([ref.ctx_frag(ctx, rb_ * 8 + rt, p) for rt in range(8)]) for p in range(4)])
            cmp("ctx j=%d rb=%d" % (j, rb_), got[32 + 4*h:36 + 4*h], e)
        print("  retry", wv[0].s[gen.S_RETRY], wv[0].counts, "%.1fs" % (time.time() - t0))
if "k3" in which:
    r = np.random.default_rng(1)
    cat = ref.rb(r.standard_normal((2048, 5120), dtype=np.float32))
    cw[:] = ref.bits(ref.ctx_layout(cat))
    g = ref.gate(d); ws[gen.WS_G // 2:].view(np.float32)[:2048] = g
    for wg in (0, 173):
        s.run_wg("out_kernel", wg, kaddr)
        x, i = wg & 7, wg >> 3
        rb_, cb = 4 * (x >> 1) + (i >> 3), 8 * (x & 1) + (i & 7)
        rows, cols = slice(128*rb_, 128*rb_+128), slice(64*cb, 64*cb+64)
        e = g[rows, None] * (cat[rows, 1024:] @ d["wo"][:, cols]) + (1 - g[rows, None]) * (cat[rows, :1024] @ d["wob"][:, cols])
        cmp("out wg=%d" % wg, sim.bf16_to_f32(out.reshape(2048, 1024)[rows, cols]), e)
s.report()
```

```python
import asmlib, json, os
os.makedirs("out", exist_ok=True)
cases = []
def add(name, wgbase, n, depth, buf="in", base=0, sc="", store=False, pre=""):
    b = f"""
    s_load_dwordx4 s[4:7], s[0:1], 0
    s_load_dwordx2 s[16:17], s[0:1], 16
    v_lshrrev_b32 v2, 6, v0
    v_lshlrev_b32 v1, 4, v0
    v_readfirstlane_b32 s33, v2
    s_waitcnt lgkmcnt(0)
    s_mov_b32 s8, {'s4' if buf=='in' else 's16'}
    s_mov_b32 s9, {'s5' if buf=='in' else 's17'}
    s_mov_b32 s10, {0x4000000 if buf=='in' else 0x10000000}
    s_mov_b32 s11, 0x20000
    s_mov_b32 s12, s6
    s_mov_b32 s13, s7
    s_mov_b32 s14, 0x1000000
    s_mov_b32 s15, 0x20000
    {wgbase}
    s_add_u32 s20, s20, {base}
    s_lshl_b32 m0, s33, 10
    s_lshl_b32 s22, s2, 2
    s_add_u32 s22, s22, s33
    s_lshl_b32 s22, s22, 4
    s_mov_b32 s23, {n}
    s_barrier
    s_memrealtime s[24:25]
    s_waitcnt lgkmcnt(0)
L_loop:
    {'buffer_store_dwordx4 v[4:7], v1, s[8:11], s20 offen' + sc if store else 'buffer_load_dwordx4 v1, s[8:11], s20 offen' + sc + ' lds'}
    s_add_u32 s20, s20, 4096
    s_waitcnt vmcnt({depth})
    s_sub_u32 s23, s23, 1
    s_cmp_lg_u32 s23, 0
    s_cbranch_scc1 L_loop
    s_waitcnt vmcnt(0)
    s_memrealtime s[26:27]
    s_waitcnt lgkmcnt(0)
    v_mov_b32 v10, s24
    v_mov_b32 v11, s26
    buffer_store_dwordx2 v[10:11], off, s[12:15], s22
    s_waitcnt vmcnt(0)
"""
    asm = asmlib.wrap(name + "_kernel", b, vgpr=64, accum=64, launch=f"grid=(256,1,1) block=(256,1,1) lds=163840")
    asmlib.build(asm, name + "_kernel", f"out/{name}.co")
    cases.append((name, n))
priv = lambda sz: f"s_mul_i32 s20, s2, {sz}"
for d in (8, 16, 36):
    add(f"hbm_priv_d{d}", priv(262144), 64, d)
    add(f"mall_priv_d{d}", priv(262144), 64, d, buf="ws", base=0xC000000)
add("hbm_sh_x", "s_lshr_b32 s20, s2, 5\n s_mul_i32 s20, s20, 0x200000", 512, 36)
add("mall_sh_x", "s_lshr_b32 s20, s2, 5\n s_mul_i32 s20, s20, 0x200000", 512, 36, buf="ws", base=0xC000000)
add("hbm_sh_h", "s_and_b32 s20, s2, 31\n s_mul_i32 s20, s20, 0x200000", 512, 36)
add("mall_sh_h", "s_and_b32 s20, s2, 31\n s_mul_i32 s20, s20, 0x200000", 512, 36, buf="ws", base=0xC000000)
for d in (4, 16):
    add(f"st_plain_d{d}", priv(131072), 32, d, buf="ws", store=True)
    add(f"st_sc1_d{d}", priv(131072), 32, d, buf="ws", store=True, sc=" sc1")
    add(f"st_nt_d{d}", priv(131072), 32, d, buf="ws", store=True, sc=" nt")
    add(f"st_sc1_hi_d{d}", priv(131072), 32, d, buf="ws", store=True, sc=" sc1", base=0xC000000)
json.dump(cases, open("out/mb8.json", "w"))
```

```python
import re
import numpy as np

U32 = np.uint32
F32 = np.float32
LANES = np.arange(64, dtype=np.uint32)


class SimError(Exception):
    pass


def f2u(x):
    return int(np.array(x, dtype=F32).view(U32))


def bf16_round(x):
    u = np.ascontiguousarray(x, dtype=F32).view(U32).astype(np.uint64)
    r = ((u + 0x7FFF + ((u >> 16) & 1)) >> 16).astype(U32) & 0xFFFF
    nan = np.isnan(x)
    if nan.any():
        r = np.where(nan, U32(0x7FC0), r)
    return r


def bf16_to_f32(u16):
    return (u16.astype(U32) << 16).view(F32)


FCONST = {"0.5": 0.5, "-0.5": -0.5, "1.0": 1.0, "-1.0": -1.0, "2.0": 2.0, "-2.0": -2.0, "4.0": 4.0, "-4.0": -4.0}
SPECIAL = {"vcc": 106, "vcc_lo": 106, "vcc_hi": 107, "m0": 124, "exec": 126, "exec_lo": 126, "exec_hi": 127}


class Op:
    __slots__ = ("kind", "idx", "n", "val", "neg", "abs")

    def __init__(self, t):
        t = t.strip()
        self.neg = self.abs = False
        self.n = 1
        self.val = None
        self.idx = None
        if t in FCONST:
            self.kind = "c"
            self.val = f2u(FCONST[t])
            return
        if t.startswith("-") and t[1:2] in "vsa|" and not t[1:2].isdigit():
            self.neg = True
            t = t[1:]
        if t.startswith("|"):
            self.abs = True
            t = t.strip("|")
        if t in SPECIAL:
            self.kind = "s"
            self.idx = SPECIAL[t]
            self.n = 2 if t in ("vcc", "exec") else 1
            return
        m = re.fullmatch(r"([vsa])(\d+)", t)
        if m:
            self.kind = m.group(1)
            self.idx = int(m.group(2))
        else:
            m = re.fullmatch(r"([vsa])\[(\d+):(\d+)\]", t)
            if m:
                self.kind = m.group(1)
                self.idx = int(m.group(2))
                self.n = int(m.group(3)) - self.idx + 1
            elif t == "off":
                self.kind = "off"
                return
            else:
                try:
                    self.val = int(t, 0) & 0xFFFFFFFFFFFFFFFF
                    self.kind = "c"
                except ValueError:
                    self.kind = "label"
                    self.val = t
                return
        if self.kind == "a":
            self.kind = "v"
            self.idx += 256

    def regs(self):
        if self.kind in ("v", "s"):
            return [(self.kind, self.idx + i) for i in range(self.n)]
        return []


TRANS = ("v_exp_f32", "v_log_f32", "v_rcp_f32", "v_rsq_f32", "v_sqrt_f32")


class Ins:
    __slots__ = ("text", "mn", "ops", "mods", "line", "cls", "defs", "uses", "vdefs", "vuses", "sdefs", "suses", "ws", "cuse", "abuse")

    def __init__(self, text, line):
        self.text = text
        self.line = line
        parts = text.split(None, 1)
        mn = parts[0]
        for suf in ("_e32", "_e64"):
            if mn.endswith(suf):
                mn = mn[:-4]
        self.mn = mn
        rest = parts[1] if len(parts) > 1 else ""
        self.mods = {}
        self.ops = []
        self.ws = 1
        if mn == "s_waitcnt":
            for k, v in re.findall(r"(vmcnt|lgkmcnt|expcnt)\((\d+)\)", rest):
                self.mods[k] = int(v)
        elif mn == "s_getreg_b32":
            self.ops = [Op(rest.split(",")[0])]
        else:
            toks = []
            depth = 0
            cur = ""
            for ch in rest:
                if ch == "[":
                    depth += 1
                if ch == "]":
                    depth -= 1
                if ch == "," and depth == 0:
                    toks.append(cur)
                    cur = ""
                else:
                    cur += ch
            if cur.strip():
                toks.append(cur)
            if toks:
                last = toks[-1].split()
                if mn in ("buffer_wbl2", "buffer_inv"):
                    toks = []
                    ms = last
                else:
                    toks[-1] = last[0]
                    ms = last[1:]
                for m in ms:
                    if ":" in m:
                        k, v = m.split(":", 1)
                        self.mods[k] = v if v.startswith("[") else int(v, 0)
                    else:
                        self.mods[m] = True
            self.ops = [Op(t) for t in toks]
        self.classify()

    def classify(self):
        mn, o = self.mn, self.ops
        defs, uses = [], []
        self.cuse = []
        self.abuse = []
        R = lambda i: o[i].regs()
        if mn.startswith("v_mfma") or mn.startswith("v_smfmac"):
            self.cls = "mfma"
            defs = R(0)
            self.abuse = [r[1] for r in R(1) + R(2)]
            if mn.startswith("v_smfmac"):
                self.abuse += [r[1] for r in R(3)]
                self.cuse = [r[1] for r in R(0)]
                uses = R(0) + R(1) + R(2) + R(3)
            else:
                self.cuse = [r[1] for r in R(3)]
                uses = R(1) + R(2) + R(3)
        elif mn.startswith("v_"):
            self.cls = "trans" if mn in TRANS else "valu"
            if mn.startswith("v_permlane"):
                defs = R(0) + R(1)
                uses = R(0) + R(1)
            elif mn.startswith("v_cmp"):
                defs = R(0)
                uses = R(1) + R(2)
            elif mn == "v_nop":
                pass
            else:
                defs = R(0)
                for i in range(1, len(o)):
                    uses += R(i)
                if mn in ("v_fmac_f32", "v_writelane_b32") or mn.endswith("_dpp"):
                    uses += R(0)
        elif mn.startswith("ds_"):
            self.cls = "ds"
            if "read" in mn or "swizzle" in mn or "bpermute" in mn:
                defs = R(0)
                for i in range(1, len(o)):
                    uses += R(i)
            else:
                for i in range(len(o)):
                    uses += R(i)
        elif mn.startswith("buffer_") or mn.startswith("global_"):
            self.cls = "vmem"
            if mn in ("buffer_wbl2", "buffer_inv"):
                pass
            elif "load" in mn and "lds" not in self.mods:
                defs = R(0)
                for i in range(1, len(o)):
                    uses += R(i)
            else:
                for i in range(len(o)):
                    uses += R(i)
                if "lds" in self.mods:
                    uses.append(("s", 124))
                if "atomic" in mn and "sc0" in self.mods:
                    defs = R(0)
        elif mn.startswith("s_load") or mn in ("s_memtime", "s_memrealtime"):
            self.cls = "smem"
            defs = R(0)
            if len(o) > 1:
                uses = R(1)
        else:
            self.cls = "salu"
            if mn == "s_nop":
                self.ws = o[0].val + 1
            elif mn.startswith("s_cmp") or mn.startswith("s_bitcmp"):
                uses = R(0) + R(1)
            elif mn.startswith("s_cbranch") or mn in ("s_branch", "s_barrier", "s_waitcnt", "s_endpgm", "s_setprio", "s_sleep"):
                pass
            else:
                defs = R(0)
                for i in range(1, len(o)):
                    uses += R(i)
                if mn in ("s_and_saveexec_b64", "s_or_saveexec_b64"):
                    defs += [("s", 126), ("s", 127)]
                if mn in ("s_addk_i32",):
                    uses += R(0)
        self.defs, self.uses = defs, uses
        self.vdefs = [r[1] for r in defs if r[0] == "v"]
        self.vuses = [r[1] for r in uses if r[0] == "v"]
        self.sdefs = [r[1] for r in defs if r[0] == "s"]
        self.suses = [r[1] for r in uses if r[0] == "s"]


def parse(asm):
    ins, labels = [], {}
    intext = False
    for ln, raw in enumerate(asm.split("\n"), 1):
        s = raw.split(";")[0].split("//")[0].strip()
        if not s:
            continue
        if s.startswith(".text"):
            intext = True
            continue
        if s.startswith(".section"):
            intext = False
            continue
        if not intext:
            continue
        if s.endswith(":"):
            labels[s[:-1]] = len(ins)
            continue
        if s.startswith("."):
            continue
        ins.append(Ins(s, ln))
    return ins, labels


class Mem:
    def __init__(self):
        self.bufs = []
        self.next = 0x7F0000000000

    def add(self, name, arr):
        arr = np.ascontiguousarray(arr).view(np.uint8).reshape(-1)
        base = self.next
        self.next += (len(arr) + 0xFFFFFFF) & ~0xFFFFFFF
        self.next += 0x10000000
        self.bufs.append((base, arr, name))
        return base

    def find(self, lo, hi):
        for base, arr, name in self.bufs:
            if base <= lo and hi <= base + len(arr):
                return base, arr, name
        raise SimError("global access outside any buffer: %x..%x" % (lo, hi))


class Wave:
    def __init__(self, wid):
        self.wid = wid
        self.v = np.zeros((512, 64), dtype=U32)
        self.v[:] = 0x7FC0DEAD
        self.s = [0xDEADBEEF] * 128
        self.s[126] = self.s[127] = 0xFFFFFFFF
        self.scc = 0
        self.pc = 0
        self.done = False
        self.t = 0
        self.vq = []
        self.lq = []
        self.pend = {}
        self.wr_valu = [-99] * 512
        self.wr_trans = [-99] * 512
        self.wr_mfma = [-99] * 512
        self.mfma_dtuple = {}
        self.rd_mfma_c = [-99] * 512
        self.st_data = [-99] * 512
        self.swr_valu = [-99] * 128
        self.m0_t = -99
        self.counts = {}


class Sim:
    def __init__(self, asm, mem=None, lds_bytes=163840, data=True, autowait=None, verbose=False):
        self.ins, self.labels = parse(asm)
        self.mem = mem
        self.data = data
        self.lds_bytes = lds_bytes
        self.autowait = autowait
        self.autonop = {}
        self.errors = {}
        self.info = {}
        self.verbose = verbose
        self.hook = None
        self.bank_done = set()

    def err(self, w, i, msg):
        k = (i.line, msg.split(":")[0])
        if k not in self.errors:
            self.errors[k] = "line %d wave %d: %s  || %s" % (i.line, w.wid, msg, i.text)

    def rd(self, w, o, k=0):
        if o.kind == "v":
            x = w.v[o.idx + k]
        elif o.kind == "s":
            x = np.full(64, w.s[o.idx + k], dtype=U32)
        else:
            x = np.full(64, o.val & 0xFFFFFFFF, dtype=U32)
        return x

    def rdf(self, w, o, k=0):
        x = self.rd(w, o, k).view(F32)
        if o.abs:
            x = np.abs(x)
        if o.neg:
            x = -x
        return x

    def srd(self, w, o, k=0):
        if o.kind == "s":
            return w.s[o.idx + k]
        if o.kind == "c":
            return (o.val >> (32 * k)) & 0xFFFFFFFF
        raise SimError("bad scalar operand")

    def s64(self, w, o):
        return self.srd(w, o, 0) | (self.srd(w, o, 1) << 32)

    def execmask(self, w):
        e = w.s[126] | (w.s[127] << 32)
        if e == 0xFFFFFFFFFFFFFFFF:
            return None
        return np.array([(e >> i) & 1 for i in range(64)], dtype=bool)

    def wr(self, w, o, x, k=0):
        x = np.asarray(x)
        if x.dtype == F32:
            x = x.view(U32)
        elif x.dtype != U32:
            x = (x.astype(np.int64) & 0xFFFFFFFF).astype(U32)
        m = self.execmask(w)
        if m is None:
            w.v[o.idx + k] = x
        else:
            w.v[o.idx + k] = np.where(m, x, w.v[o.idx + k])

    def wmask(self, w, o, b):
        m = self.execmask(w)
        if m is not None:
            b = b & m
        e = 0
        for i in np.nonzero(b)[0]:
            e |= 1 << int(i)
        w.s[o.idx] = e & 0xFFFFFFFF
        w.s[o.idx + 1] = e >> 32

    def rmask(self, w, o):
        e = w.s[o.idx] | (w.s[o.idx + 1] << 32)
        return np.array([(e >> i) & 1 for i in range(64)], dtype=bool)

    def retire(self, w, q, n):
        while len(q) > n:
            oid, regs = q.pop(0)
            self.done_epoch[oid] = self.epoch
            for r in regs:
                if w.pend.get(r, (None, None))[1] == oid:
                    del w.pend[r]

    def newop(self, w, kind, regs):
        oid = len(self.done_epoch)
        self.done_epoch.append(1 << 30)
        self.op_wave.append(w.wid)
        self.op_isds.append(kind == "lg")
        q = w.vq if kind == "vm" else w.lq
        q.append((oid, regs))
        for r in regs:
            w.pend[r] = (kind, oid)
        if kind == "vm" and len(q) > 63:
            self.retire(w, q, 63)
            self.info["vmcnt>63"] = self.info.get("vmcnt>63", 0) + 1
        return oid

    def check_pending(self, w, i, ii):
        if self.autowait is not None and ii in self.autowait:
            aw = self.autowait[ii]
            if "vmcnt" in aw:
                self.retire(w, w.vq, aw["vmcnt"])
            if "lgkmcnt" in aw:
                self.retire(w, w.lq, aw["lgkmcnt"])
            w.t += 1
        if not w.pend:
            return
        for r in i.uses + i.defs:
            p = w.pend.get(r)
            if p is None:
                continue
            kind, oid = p
            q = w.vq if kind == "vm" else w.lq
            if r in i.defs and r not in i.uses and ((kind == "lg" and i.cls == "ds") or (kind == "vm" and i.cls == "vmem")):
                continue
            pos = [x[0] for x in q].index(oid)
            n = len(q) - 1 - pos
            if kind == "lg":
                if self.op_smem.get(oid):
                    n = 0
                else:
                    n -= sum(1 for x in q[pos:] if self.op_smem.get(x[0]))
                n = min(n, 15)
            if self.autowait is not None:
                aw = self.autowait.setdefault(ii, {})
                key = "vmcnt" if kind == "vm" else "lgkmcnt"
                aw[key] = min(aw.get(key, 99), n)
            else:
                self.err(w, i, "missing waitcnt: %s%d needs %s(%d)" % (r[0], r[1], kind, n))
            self.retire(w, q, n)

    def hazards(self, w, i, ii):
        have = self.autonop.get(ii, 0)
        w.t += have
        t = w.t
        cls = i.cls

        def need(arr, regs, n, what):
            for r in regs:
                d = t - arr[r] - 1
                if d < n:
                    if self.autowait is not None:
                        self.autonop[ii] = max(self.autonop.get(ii, 0), have + n - d)
                    else:
                        self.err(w, i, "hazard %s: reg %d distance %d < %d" % (what, r, d, n))
                        return

        if cls == "mfma":
            need(w.wr_valu, i.vuses, 2, "valu->mfma")
            need(w.wr_mfma, i.abuse, 8, "mfmaD->mfmaAB")
            if i.cuse:
                tup = (i.cuse[0], len(i.cuse), i.mn)
                for r in i.cuse:
                    if t - w.wr_mfma[r] - 1 < 6 and w.mfma_dtuple.get(r) != tup:
                        self.err(w, i, "hazard mfmaD->mfmaC overlap: reg %d" % r)
            if i.vdefs[0] not in i.cuse:
                need(w.wr_mfma, i.vdefs, 6, "mfmaD->mfmaD waw")
        elif cls in ("valu", "trans"):
            need(w.wr_mfma, i.vuses + i.vdefs, 8, "mfmaD->valu")
            need(w.rd_mfma_c, i.vdefs, 3, "mfmaC war valu")
            need(w.st_data, i.vdefs, 2, "store data war")
            if cls == "valu":
                need(w.wr_trans, i.vuses, 1, "trans->valu")
            if i.mn.startswith("v_permlane") or i.mn.endswith("_dpp"):
                need(w.wr_valu, i.vuses, 2, "valu->permlane/dpp")
            if i.mn in ("v_readfirstlane_b32", "v_readlane_b32"):
                need(w.wr_valu, i.vuses, 1, "valu->readlane")
            need(w.swr_valu, i.suses, 2, "valu sgpr->valu")
        elif cls in ("ds", "vmem"):
            need(w.wr_mfma, i.vuses + i.vdefs, 8, "mfmaD->mem")
            need(w.wr_trans, i.vuses, 1, "trans->mem")
            need(w.st_data, i.vdefs, 1, "store data war")
            if cls == "vmem":
                need(w.swr_valu, i.suses, 5, "valu sgpr->vmem")
                if "lds" in i.mods and t - w.m0_t - 1 < 1:
                    self.err(w, i, "hazard m0->dma")
        elif cls == "salu":
            need(w.swr_valu, i.suses, 1, "valu sgpr->salu")
        if cls == "mfma":
            tup = (i.vdefs[0], len(i.vdefs), i.mn)
            for r in i.vdefs:
                w.wr_mfma[r] = t
                w.mfma_dtuple[r] = tup
            for r in i.cuse:
                w.rd_mfma_c[r] = t
        elif cls in ("valu", "trans"):
            for r in i.vdefs:
                w.wr_valu[r] = t
                if cls == "trans":
                    w.wr_trans[r] = t
            for r in i.sdefs:
                w.swr_valu[r] = t
        elif cls == "vmem" and "store" in i.mn and (i.mn.endswith("x4") or i.mn.endswith("x3")):
            for r in i.ops[0].regs():
                w.st_data[r[1]] = t
        elif cls == "salu" and 124 in i.sdefs:
            w.m0_t = t
        w.t += i.ws

    def lds_access(self, w, i, addrs, nbytes, oid, write, dma=False):
        m = self.execmask(w)
        if m is not None:
            addrs = addrs[m]
        if len(addrs) == 0:
            return None
        if int(addrs.max()) + nbytes > self.lds_bytes:
            self.err(w, i, "LDS out of range: %d" % int(addrs.max()))
            raise SimError("LDS OOR line %d" % i.line)
        if (addrs % min(nbytes, 16)).any():
            self.err(w, i, "LDS misaligned")
        g = ((addrs[:, None] >> 2) + np.arange(nbytes // 4)[None, :]).reshape(-1)
        de = self.done_epoch
        for o in np.unique(self.lw[g]):
            if o < 0:
                if not write:
                    self.info["lds uninit read line %d" % i.line] = 1
                continue
            if self.op_wave[o] == w.wid:
                if self.op_isds[o] and not dma:
                    continue
                if de[o] > self.epoch:
                    self.err(w, i, "LDS race own-wave %s: earlier write not waited" % ("WAW" if write else "RAW"))
            elif de[o] >= self.epoch:
                self.err(w, i, "LDS race %s: write by wave %d not complete before barrier" % ("WAW" if write else "RAW", self.op_wave[o]))
        if write:
            for ow in range(self.nw):
                for o in np.unique(self.lr[ow][g]):
                    if o < 0:
                        continue
                    if ow == w.wid:
                        if dma and de[o] > self.epoch:
                            self.err(w, i, "LDS race own-wave WAR: read not waited")
                    elif de[o] >= self.epoch:
                        self.err(w, i, "LDS race WAR: read by wave %d not complete before barrier" % ow)
            self.lw[g] = oid
        else:
            self.lr[w.wid][g] = oid
        return g

    def bank_check(self, i, addrs, kind):
        if kind == "b128":
            groups = [[0, 1, 2, 3, 12, 13, 14, 15, 20, 21, 22, 23, 24, 25, 26, 27], [4, 5, 6, 7, 8, 9, 10, 11, 16, 17, 18, 19, 28, 29, 30, 31]]
            groups += [[x + 32 for x in g] for g in groups]
            n = 4
        else:
            groups = [list(range(32)), list(range(32, 64))]
            n = 2
        for g in groups:
            a = np.unique(addrs[g])
            b = (((a[:, None] >> 2) + np.arange(n)[None, :]) & 63).reshape(-1)
            c = np.bincount(b.astype(np.int64), minlength=64).max()
            if c > 1:
                self.info["bank conflict x%d line %d %s" % (c, i.line, i.mn)] = 1
                return

    def buf_addr(self, w, i, vo, srd, so, nbytes):
        base = w.s[srd.idx] | ((w.s[srd.idx + 1] & 0xFFFF) << 32)
        nrec = w.s[srd.idx + 2]
        if w.s[srd.idx + 3] != 0x20000:
            self.err(w, i, "bad SRD word3")
        off = np.full(64, self.srd(w, so) + i.mods.get("offset", 0), dtype=np.int64)
        if "offen" in i.mods:
            off += w.v[vo.idx].astype(np.int64)
        ok = off + nbytes <= nrec
        m = self.execmask(w)
        if m is not None:
            act = m
        else:
            act = np.ones(64, dtype=bool)
        if (act & ~ok).any():
            self.info["SRD range drop line %d" % i.line] = 1
        ok &= act
        if (off[ok] % min(nbytes, 4)).any():
            self.err(w, i, "global misaligned")
        return base, off, ok, act

    def gload(self, base, off, ok, nbytes):
        out = np.zeros((64, nbytes), dtype=np.uint8)
        if ok.any():
            lo = base + int(off[ok].min())
            hi = base + int(off[ok].max()) + nbytes
            b, arr, name = self.mem.find(lo, hi)
            if self.data:
                idx = (base - b + off[ok])[:, None] + np.arange(nbytes)[None, :]
                out[ok] = arr[idx]
        return out.view(U32)

    def gstore(self, base, off, ok, data):
        nbytes = data.shape[1] * 4
        if ok.any():
            lo = base + int(off[ok].min())
            hi = base + int(off[ok].max()) + nbytes
            b, arr, name = self.mem.find(lo, hi)
            if name.startswith("in"):
                raise SimError("store to input " + name)
            if self.data:
                idx = (base - b + off[ok])[:, None] + np.arange(nbytes)[None, :]
                arr[idx] = np.ascontiguousarray(data[ok]).view(np.uint8).reshape(-1, nbytes)

    def frag(self, w, o):
        x = w.v[o.idx:o.idx + o.n]
        lo = (x << 16).view(F32)
        hi = (x & 0xFFFF0000).view(F32)
        e = np.stack([lo, hi], axis=1).reshape(2 * o.n, 64)
        return e.reshape(2 * o.n, 4, 16).transpose(2, 1, 0).reshape(16, 8 * o.n)

    def step(self, w):
        ii = w.pc
        i = self.ins[ii]
        self.check_pending(w, i, ii)
        self.hazards(w, i, ii)
        w.counts[i.cls] = w.counts.get(i.cls, 0) + 1
        w.pc += 1
        mn, o = i.mn, i.ops
        cls = i.cls
        if cls == "mfma":
            if not self.data:
                return
            if mn != "v_mfma_f32_16x16x32_bf16":
                raise SimError("unsupported " + mn)
            A = self.frag(w, o[1])
            B = self.frag(w, o[2])
            with np.errstate(all="ignore"):
                D = A @ B.T
                D = D.reshape(4, 4, 16).transpose(1, 0, 2).reshape(4, 64)
                if o[3].kind == "v":
                    D = D + w.v[o[3].idx:o[3].idx + 4].view(F32)
                elif o[3].val != 0:
                    raise SimError("const C")
            w.v[o[0].idx:o[0].idx + 4] = D.astype(F32).view(U32)
            return
        if cls in ("valu", "trans"):
            self.valu(w, i)
            return
        if cls == "ds":
            self.dsop(w, i)
            return
        if cls == "vmem":
            self.vmem(w, i)
            return
        if cls == "smem":
            oid = self.newop(w, "lg", i.defs if mn != "s_memtime" else [])
            self.op_smem[oid] = True
            if mn.startswith("s_load"):
                a = self.s64(w, o[1]) + o[2].val
                b, arr, _ = self.mem.find(a, a + 4 * o[0].n)
                vals = arr[a - b:a - b + 4 * o[0].n].view(U32)
                for k in range(o[0].n):
                    w.s[o[0].idx + k] = int(vals[k])
            else:
                w.s[o[0].idx] = w.t & 0xFFFFFFFF
                w.s[o[0].idx + 1] = 0
            return
        return self.salu(w, i)

    def salu(self, w, i):
        mn, o = i.mn, i.ops
        S = lambda k: self.srd(w, o[k])
        M = 0xFFFFFFFF
        sg = lambda x: x - (1 << 32) if x >> 31 else x

        def st(x, scc=None):
            w.s[o[0].idx] = x & M
            if scc is not None:
                w.scc = int(scc)

        if mn == "s_waitcnt":
            if "vmcnt" in i.mods:
                self.retire(w, w.vq, i.mods["vmcnt"])
            if "lgkmcnt" in i.mods:
                n = i.mods["lgkmcnt"]
                if n == 0 or not any(self.op_smem.get(x[0]) for x in w.lq):
                    self.retire(w, w.lq, n)
                else:
                    sm = [x for x in w.lq if self.op_smem.get(x[0])]
                    w.lq[:] = [x for x in w.lq if not self.op_smem.get(x[0])]
                    self.retire(w, w.lq, n)
                    w.lq[:0] = sm
        elif mn == "s_barrier":
            return "barrier"
        elif mn == "s_endpgm":
            self.retire(w, w.vq, 0)
            self.retire(w, w.lq, 0)
            w.done = True
            return "end"
        elif mn in ("s_nop", "s_setprio", "s_sleep"):
            pass
        elif mn == "s_mov_b32":
            st(S(1))
        elif mn == "s_movk_i32":
            st(S(1))
        elif mn == "s_getreg_b32":
            st(0)
        elif mn == "s_getpc_b64":
            w.s[o[0].idx], w.s[o[0].idx + 1] = 0x1000, 0x7E
        elif mn == "s_mov_b64":
            a, b = self.srd(w, o[1], 0), self.srd(w, o[1], 1)
            w.s[o[0].idx], w.s[o[0].idx + 1] = a, b
        elif mn == "s_add_u32":
            x = S(1) + S(2)
            st(x, x >> 32)
        elif mn == "s_addc_u32":
            x = S(1) + S(2) + w.scc
            st(x, x >> 32)
        elif mn == "s_sub_u32":
            x = S(1) - S(2)
            st(x, x < 0)
        elif mn == "s_subb_u32":
            x = S(1) - S(2) - w.scc
            st(x, x < 0)
        elif mn == "s_add_i32":
            st(S(1) + S(2), 0)
        elif mn == "s_sub_i32":
            st(S(1) - S(2), 0)
        elif mn == "s_mul_i32":
            st(S(1) * S(2))
        elif mn == "s_lshl_b32":
            x = (S(1) << (S(2) & 31)) & M
            st(x, x != 0)
        elif mn == "s_lshr_b32":
            x = S(1) >> (S(2) & 31)
            st(x, x != 0)
        elif mn == "s_and_b32":
            x = S(1) & S(2)
            st(x, x != 0)
        elif mn == "s_or_b32":
            x = S(1) | S(2)
            st(x, x != 0)
        elif mn == "s_xor_b32":
            x = S(1) ^ S(2)
            st(x, x != 0)
        elif mn == "s_min_u32":
            st(min(S(1), S(2)), S(1) < S(2))
        elif mn == "s_max_u32":
            st(max(S(1), S(2)), S(1) > S(2))
        elif mn == "s_max_i32":
            st(max(sg(S(1)), sg(S(2))), sg(S(1)) > sg(S(2)))
        elif mn == "s_bfe_u32":
            x = (S(1) >> (S(2) & 31)) & ((1 << ((S(2) >> 16) & 0x7F)) - 1)
            st(x, x != 0)
        elif mn == "s_cselect_b32":
            st(S(1) if w.scc else S(2))
        elif mn in ("s_or_b64", "s_and_b64", "s_andn2_b64", "s_xor_b64"):
            a, b = self.s64(w, o[1]), self.s64(w, o[2])
            x = {"s_or_b64": a | b, "s_and_b64": a & b, "s_andn2_b64": a & ~b, "s_xor_b64": a ^ b}[mn]
            w.s[o[0].idx], w.s[o[0].idx + 1] = x & M, (x >> 32) & M
            w.scc = int(x != 0)
        elif mn == "s_and_saveexec_b64":
            e = w.s[126] | (w.s[127] << 32)
            x = e & self.s64(w, o[1])
            w.s[o[0].idx], w.s[o[0].idx + 1] = e & M, e >> 32
            w.s[126], w.s[127] = x & M, x >> 32
            w.scc = int(x != 0)
        elif mn.startswith("s_cmp_"):
            c, ty = mn.split("_")[2:4]
            if ty == "u64":
                a, b = self.s64(w, o[0]), self.s64(w, o[1])
            else:
                a, b = S(0), S(1)
            if ty == "i32":
                a, b = sg(a), sg(b)
            w.scc = int({"eq": a == b, "lg": a != b, "lt": a < b, "le": a <= b, "gt": a > b, "ge": a >= b}[c])
        elif mn == "s_bitcmp1_b32":
            w.scc = (S(0) >> (S(1) & 31)) & 1
        elif mn == "s_bitcmp0_b32":
            w.scc = 1 - ((S(0) >> (S(1) & 31)) & 1)
        elif mn == "s_branch":
            w.pc = self.labels[o[0].val]
        elif mn.startswith("s_cbranch"):
            c = mn[10:]
            vcc = w.s[106] | w.s[107]
            ex = w.s[126] | w.s[127]
            if c in ("vccz", "vccnz") and w.t - 1 - max(w.swr_valu[106], w.swr_valu[107]) - 1 < 1:
                pass
            if {"scc0": not w.scc, "scc1": w.scc, "vccz": not vcc, "vccnz": vcc, "execz": not ex, "execnz": ex}[c]:
                w.pc = self.labels[o[0].val]
        else:
            raise SimError("unsupported salu " + i.text)

    def valu(self, w, i):
        mn, o = i.mn, i.ops
        R = lambda k: self.rd(w, o[k])
        L = lambda k: self.rd(w, o[k]).astype(np.int64)
        Fv = lambda k: self.rdf(w, o[k])
        W = lambda x: self.wr(w, o[0], x)
        with np.errstate(all="ignore"):
            if mn in ("v_mov_b32", "v_accvgpr_read_b32", "v_accvgpr_write_b32", "v_accvgpr_mov_b32"):
                W(R(1).copy())
            elif mn == "v_nop":
                pass
            elif mn == "v_mov_b64":
                assert o[1].kind == "c" and o[1].val == 0
                self.wr(w, o[0], np.zeros(64, dtype=U32), 0)
                self.wr(w, o[0], np.zeros(64, dtype=U32), 1)
            elif mn == "v_exp_f32":
                if self.data:
                    W(np.exp2(Fv(1)).astype(F32))
            elif mn == "v_cvt_pk_bf16_f32":
                if self.data:
                    W(bf16_round(Fv(1)) | (bf16_round(Fv(2)) << 16))
            elif mn == "v_add_u32":
                W(L(1) + L(2))
            elif mn == "v_sub_u32":
                W(L(1) - L(2))
            elif mn == "v_subrev_u32":
                W(L(2) - L(1))
            elif mn == "v_lshlrev_b32":
                W(L(2) << (L(1) & 31))
            elif mn == "v_lshrrev_b32":
                W(L(2) >> (L(1) & 31))
            elif mn == "v_and_b32":
                W(R(1) & R(2))
            elif mn == "v_or_b32":
                W(R(1) | R(2))
            elif mn == "v_xor_b32":
                W(R(1) ^ R(2))
            elif mn == "v_lshl_add_u32":
                W((L(1) << (L(2) & 31)) + L(3))
            elif mn == "v_lshl_or_b32":
                W((L(1) << (L(2) & 31)) | L(3))
            elif mn == "v_add_lshl_u32":
                W(((L(1) + L(2)) & 0xFFFFFFFF) << (L(3) & 31))
            elif mn == "v_and_or_b32":
                W((R(1) & R(2)) | R(3))
            elif mn == "v_add3_u32":
                W(L(1) + L(2) + L(3))
            elif mn == "v_or3_b32":
                W(R(1) | R(2) | R(3))
            elif mn == "v_mul_u32_u24":
                W((L(1) & 0xFFFFFF) * (L(2) & 0xFFFFFF))
            elif mn == "v_mad_u32_u24":
                W((L(1) & 0xFFFFFF) * (L(2) & 0xFFFFFF) + L(3))
            elif mn == "v_mul_lo_u32":
                W((R(1).astype(np.uint64) * R(2).astype(np.uint64)).astype(U32))
            elif mn == "v_bfe_u32":
                W((L(1) >> (L(2) & 31)) & ((1 << (L(3) & 31)) - 1))
            elif mn == "v_min_u32":
                W(np.minimum(L(1), L(2)))
            elif mn == "v_max3_u32":
                W(np.maximum(np.maximum(L(1), L(2)), L(3)))
            elif mn == "v_max_u32":
                W(np.maximum(L(1), L(2)))
            elif mn == "v_readfirstlane_b32":
                m = self.execmask(w)
                l = 0 if m is None or not m.any() else int(np.nonzero(m)[0][0])
                w.s[o[0].idx] = int(R(1)[l])
            elif mn == "v_readlane_b32":
                w.s[o[0].idx] = int(R(1)[self.srd(w, o[2]) & 63])
            elif mn == "v_writelane_b32":
                w.v[o[0].idx][self.srd(w, o[2]) & 63] = self.srd(w, o[1])
            elif mn == "v_cndmask_b32":
                W(np.where(self.rmask(w, o[3]), R(2), R(1)))
            elif mn.startswith("v_cmp_"):
                c, ty = mn.split("_")[2:4]
                if ty == "f32":
                    a, b = Fv(1), Fv(2)
                elif ty == "i32":
                    a, b = R(1).view(np.int32), R(2).view(np.int32)
                else:
                    a, b = R(1), R(2)
                r = {"eq": a == b, "ne": a != b, "lt": a < b, "le": a <= b, "gt": a > b, "ge": a >= b,
                     "nle": ~(a <= b), "nge": ~(a >= b), "nlt": ~(a < b), "ngt": ~(a > b), "neq": ~(a == b)}[c]
                if not self.data and ty == "f32":
                    r = np.full(64, bool(self.force_fcmp))
                self.wmask(w, o[0], r)
            elif mn == "v_add_f32":
                W(Fv(1) + Fv(2))
            elif mn == "v_sub_f32":
                W(Fv(1) - Fv(2))
            elif mn == "v_subrev_f32":
                W(Fv(2) - Fv(1))
            elif mn == "v_mul_f32":
                W(Fv(1) * Fv(2))
            elif mn == "v_fma_f32":
                W((Fv(1).astype(np.float64) * Fv(2) + Fv(3)).astype(F32))
            elif mn == "v_fmac_f32":
                W((Fv(1).astype(np.float64) * Fv(2) + Fv(0)).astype(F32))
            elif mn == "v_max_f32":
                W(np.fmax(Fv(1), Fv(2)))
            elif mn == "v_min_f32":
                W(np.fmin(Fv(1), Fv(2)))
            elif mn == "v_max3_f32":
                W(np.fmax(np.fmax(Fv(1), Fv(2)), Fv(3)))
            elif mn == "v_rcp_f32":
                W((F32(1) / Fv(1)).astype(F32))
            elif mn in ("v_pk_mul_f32", "v_pk_add_f32", "v_pk_fma_f32"):
                ns = 3 if mn == "v_pk_fma_f32" else 2
                sel = eval(i.mods.get("op_sel", "[0,0,0]"))
                selh = eval(i.mods.get("op_sel_hi", "[1,1,1]"))
                res = []
                for s_ in (sel, selh):
                    x = [self.rdf(w, o[k + 1], s_[k] if o[k + 1].kind != "c" else 0) for k in range(ns)]
                    if mn == "v_pk_mul_f32":
                        res.append(x[0] * x[1])
                    elif mn == "v_pk_add_f32":
                        res.append(x[0] + x[1])
                    else:
                        res.append((x[0].astype(np.float64) * x[1] + x[2]).astype(F32))
                self.wr(w, o[0], res[0], 0)
                self.wr(w, o[0], res[1], 1)
            elif mn == "v_permlane32_swap_b32":
                a, b = w.v[o[0].idx], w.v[o[1].idx]
                t = a[32:].copy()
                a[32:] = b[:32]
                b[:32] = t
            elif mn == "v_permlane16_swap_b32":
                a, b = w.v[o[0].idx], w.v[o[1].idx]
                for r in (0, 32):
                    t = a[r + 16:r + 32].copy()
                    a[r + 16:r + 32] = b[r:r + 16]
                    b[r:r + 16] = t
            elif mn in ("v_add_f32_dpp", "v_max_f32_dpp", "v_mov_b32_dpp"):
                src = R(1)
                if "row_ror" in i.mods:
                    n = i.mods["row_ror"]
                    idx = (LANES & 48) | ((LANES + 16 - n) & 15)
                elif "quad_perm" in i.mods:
                    p = np.array(eval(i.mods["quad_perm"]), dtype=U32)
                    idx = (LANES & 60) | p[LANES & 3]
                else:
                    raise SimError("dpp mode")
                src = src[idx]
                if mn == "v_mov_b32_dpp":
                    W(src)
                elif mn == "v_add_f32_dpp":
                    W(src.view(F32) + Fv(2))
                else:
                    W(np.fmax(src.view(F32), Fv(2)))
            else:
                raise SimError("unsupported valu " + i.text)

    def dsop(self, w, i):
        mn, o = i.mn, i.ops
        off = i.mods.get("offset", 0)
        lds32 = self.lds.view(U32)
        m = self.execmask(w)
        if mn.startswith("ds_read"):
            n = o[0].n
            addrs = w.v[o[1].idx].astype(np.int64) + off
            oid = self.newop(w, "lg", i.defs)
            g = self.lds_access(w, i, addrs, 4 * n, oid, False)
            if m is None and n >= 2 and i.line not in self.bank_done:
                self.bank_done.add(i.line)
                self.bank_check(i, addrs, "b128" if n == 4 else "b64")
            if not self.data and not (mn == "ds_read_b32"):
                return
            if mn == "ds_read_b64_tr_b16":
                if m is not None:
                    self.err(w, i, "tr read with partial exec")
                d = lds32[g].reshape(64, 2).copy().view(np.uint16).reshape(4, 4, 4, 4)
                t = d.transpose(0, 2, 3, 1).reshape(64, 4)
                t = np.ascontiguousarray(t).view(U32)
                w.v[o[0].idx] = t[:, 0]
                w.v[o[0].idx + 1] = t[:, 1]
            elif g is not None:
                d = lds32[g].reshape(-1, n)
                for k in range(n):
                    if m is None:
                        w.v[o[0].idx + k] = d[:, k]
                    else:
                        w.v[o[0].idx + k][m] = d[:, k]
        elif mn.startswith("ds_write"):
            n = o[1].n
            addrs = w.v[o[0].idx].astype(np.int64) + off
            oid = self.newop(w, "lg", [])
            g = self.lds_access(w, i, addrs, 4 * n, oid, True)
            if g is not None:
                d = w.v[o[1].idx:o[1].idx + n].T
                if m is not None:
                    d = d[m]
                lds32[g] = d.reshape(-1)
        else:
            raise SimError("unsupported ds " + i.text)

    def vmem(self, w, i):
        mn, o = i.mn, i.ops
        if mn in ("buffer_wbl2", "buffer_inv"):
            self.newop(w, "vm", [])
            return
        if mn == "global_load_dword":
            self.newop(w, "vm", i.defs)
            return
        n = {"dword": 1, "dwordx2": 2, "dwordx4": 4, "add": 1}[mn.split("_")[-1]]
        if "lds" in i.mods:
            base, off, ok, act = self.buf_addr(w, i, o[0], o[1], o[2], 4 * n)
            d = self.gload(base, off, ok, 4 * n)
            oid = self.newop(w, "vm", [])
            addrs = (w.s[124] & 0x3FFFC) + i.mods.get("offset", 0) + LANES.astype(np.int64) * (4 * n)
            g = self.lds_access(w, i, addrs, 4 * n, oid, True, dma=True)
            if g is not None and self.data:
                self.lds.view(U32)[g] = d[act].reshape(-1)
        elif "load" in mn:
            base, off, ok, act = self.buf_addr(w, i, o[1], o[2], o[3], 4 * n)
            sv = self.data
            if n == 1:
                self.data = True
            d = self.gload(base, off, ok, 4 * n)
            self.data = sv
            self.newop(w, "vm", i.defs)
            for k in range(n):
                self.wr(w, o[0], d[:, k].copy(), k)
        elif "store" in mn:
            base, off, ok, act = self.buf_addr(w, i, o[1], o[2], o[3], 4 * n)
            self.gstore(base, off, ok, w.v[o[0].idx:o[0].idx + n].T)
            if self.hook:
                self.hook(w, i, base, off)
            self.newop(w, "vm", [])
        elif "atomic_add" in mn:
            base, off, ok, act = self.buf_addr(w, i, o[1], o[2], o[3], 4)
            old = np.zeros(64, dtype=U32)
            for l in np.nonzero(ok)[0]:
                a = base + int(off[l])
                b, arr, _ = self.mem.find(a, a + 4)
                x = arr[a - b:a - b + 4].view(U32)
                old[l] = x[0]
                x[0] = (int(x[0]) + int(w.v[o[0].idx][l])) & 0xFFFFFFFF
            self.newop(w, "vm", i.defs)
            if i.defs:
                self.wr(w, o[0], old)
        else:
            raise SimError("unsupported vmem " + i.text)

    def run_wg(self, label, wg, kernarg_addr, nw=4, force_fcmp=False, maxsteps=3000000):
        self.nw = nw
        self.force_fcmp = force_fcmp
        self.lds = np.zeros(self.lds_bytes, dtype=np.uint8)
        self.lds.view(U32)[:] = 0x7FC0BEEF
        self.lw = np.full(self.lds_bytes // 4, -1, dtype=np.int64)
        self.lr = [np.full(self.lds_bytes // 4, -1, dtype=np.int64) for _ in range(nw)]
        self.done_epoch, self.op_wave, self.op_isds, self.op_smem = [], [], [], {}
        self.epoch = 0
        waves = []
        for k in range(nw):
            w = Wave(k)
            w.pc = self.labels[label]
            w.s[0], w.s[1], w.s[2] = kernarg_addr & 0xFFFFFFFF, kernarg_addr >> 32, wg
            w.v[0] = LANES + 64 * k
            waves.append(w)
        self.waves = waves
        steps = 0
        while True:
            res = []
            for w in waves:
                if w.done:
                    continue
                while True:
                    steps += 1
                    if steps > maxsteps:
                        raise SimError("too many steps (hang?) at line %d" % self.ins[w.pc].line)
                    r = self.step(w)
                    if r:
                        res.append(r)
                        break
            if all(w.done for w in waves):
                break
            if "end" in res and "barrier" in res:
                raise SimError("barrier count mismatch between waves")
            self.epoch += 1
        return waves

    def report(self):
        for k in sorted(self.errors):
            print("ERROR", self.errors[k])
        for k in sorted(self.info):
            print("info:", k)
        return len(self.errors)
```

```python
import sys, time, numpy as np
import sim, gen, ref
asm = open(sys.argv[1]).read()
opts = sys.argv[2:]
qs = 40.0 if "big" in opts else 1.0
js = [int(a) for a in opts if a.isdigit()] or [0, 1, 6, 7]
d = ref.make_inputs(0, qs)
mem = sim.Mem(); ptr = {}
ws = np.full((gen.WS_DIAG + 0x100000) // 2, 0x7fc1, dtype=np.uint16)
out = np.full(2048 * 1024, 0x7fc1, dtype=np.uint16)
dbg = np.zeros(64, dtype=np.uint32)
for n in gen.KARG:
    if n == "ws": ptr[n] = mem.add("ws", ws)
    elif n == "out": ptr[n] = mem.add("out", out)
    elif n == "dbg": ptr[n] = mem.add("dbg", dbg)
    else: ptr[n] = mem.add("in_" + n, ref.bits(d[n]))
ka = np.zeros(13, dtype=np.uint64)
for n in gen.KARG: ka[gen.KARG[n] // 8] = ptr[n]
kaddr = mem.add("karg", ka)
s = sim.Sim(asm, mem)
def cmp(name, got, exp):
    err = np.abs(got - exp); den = np.abs(exp).max()
    rl = np.sqrt(np.nansum(err**2) / (exp**2).sum())
    print("%s %s: max err %.4g (max ref %.4g) rel_l2 %.3g nan %d" % ("ok " if rl < 5e-3 and not np.isnan(got).any() else "BAD", name, np.nanmax(err) if not np.isnan(err).all() else np.nan, den, rl, np.isnan(got).sum()))
cw = ws[gen.WS_CTX // 2:gen.WS_CTX // 2 + 16 * gen.CTX_RB // 2].reshape(16, gen.CTX_RB // 2)[:, :160 * 4096].reshape(16, 160, 8, 64, 8)
assert np.shares_memory(cw, ws)
gw = ws[gen.WS_G // 2:gen.WS_G // 2 + 4096].view(np.float32)
r = np.random.default_rng(1)
g = ref.gate(d)
xw = ws[gen.WS_XCH // 2:gen.WS_XCH // 2 + 256 * 8192].reshape(256, 8192)
fake = ref.bits(r.standard_normal(8192, dtype=np.float32))
def hook(w, i, base, off):
    o = int(off[0]) - gen.WS_XCH
    if base == ptr["ws"] and 0 <= o < 256 * 16384 and (o >> 14) != wg:
        sl = slice((o & 16383) // 2, (o & 16383) // 2 + 512)
        assert (xw[wg][sl] == 0xffff).all()
        xw[wg][sl] = fake[sl]
s.hook = hook
for j in js:
    idx = (13 + 9 * j) % 32; h = (idx & 7) * 4 + ((idx >> 3) & 3); wg = j * 32 + idx
    K, V = ref.kv_head(d, h); kvl = ref.kv_layout(K, V)
    kvw = ws[h * gen.HS // 2:h * gen.HS // 2 + 66 * 8192].reshape(66, 16, 64, 8)
    kvw[:] = ref.bits(kvl); kvw[8*j:8*j+8, 8:] = 0x7fc1; kvw[8*j+1:8*j+9, :8] = 0x7fc1
    cw[:] = ref.bits(r.standard_normal(cw.shape, dtype=np.float32))
    gw[:] = g; blk = j if h < 16 else 15 - j; g0 = 128 * blk + 8 * (h & 15); gw[g0:g0 + 8] = np.nan
    gen.preset_sync(dbg, ws); dbg[16 + h] -= 1; dbg[48 + j] -= 1
    t0 = time.time()
    wv = s.run_wg(gen.NAME + "_kernel", wg, kaddr)
    print("wg", wg, "h", h, "j", j, "retry", wv[0].s[gen.S_RETRY], wv[0].counts, "%.1fs" % (time.time() - t0), "dbg", dbg[16 + h], dbg[48 + j])
    got = sim.bf16_to_f32(kvw)
    cmp("K", got[8*j:8*j+8, 8:], kvl[8*j:8*j+8, 8:]); cmp("V", got[8*j+1:8*j+9, :8], kvl[8*j+1:8*j+9, :8]); cmp("g", gw, g)
    ctx = ref.attn_head(d, h, K, V); ob = ref.b_head(d, h)
    for rb_ in (j, 15 - j):
        got = sim.bf16_to_f32(cw[rb_])
        cmp("oB rb=%d" % rb_, got[h], np.stack([ref.ctx_frag(ob, rb_ * 8 + rt, 0) for rt in range(8)]))
        cmp("ctx rb=%d" % rb_, got[32 + 4*h:36 + 4*h], np.stack([np.stack([ref.ctx_frag(ctx, rb_ * 8 + rt, p) for rt in range(8)]) for p in range(4)]))
    pp, rb_, cb = wg & 1, 4 * ((wg >> 1) & 3) + (wg >> 6), (wg >> 3) & 7
    rows = slice(128*rb_, 128*rb_+128)
    cat = np.zeros((8, 16, 160, 32), dtype=np.float32)
    cat[:, ref.LR[:, None], :, ref.PERM] = sim.bf16_to_f32(cw[rb_]).transpose(2, 3, 1, 0)
    cat = cat.reshape(128, 5120)
    def part(cols):
        return g[rows, None] * (cat[:, 1024+2048*pp:3072+2048*pp] @ d["wo"][2048*pp:2048*pp+2048, cols]) + (1 - g[rows, None]) * (cat[:, 512*pp:512*pp+512] @ d["wob"][512*pp:512*pp+512, cols])
    keep, sent = slice(128*cb+64*pp, 128*cb+64*pp+64), slice(128*cb+64*(1-pp), 128*cb+64*(1-pp)+64)
    def unx(a):
        return sim.bf16_to_f32(a).reshape(4, 2, 2, 4, 16, 2, 4).transpose(0, 1, 4, 2, 5, 3, 6).reshape(128, 64)
    cmp("sent", unx(xw[wg ^ 1]), part(sent))
    cmp("out", sim.bf16_to_f32(out.reshape(2048, 1024)[rows, keep]), part(keep) + unx(fake))
s.report()
```

```python
import re
import numpy as np

U32 = np.uint32
F32 = np.float32
LANES = np.arange(64, dtype=np.uint32)


class SimError(Exception):
    pass


def f2u(x):
    return int(np.array(x, dtype=F32).view(U32))


def bf16_round(x):
    u = np.ascontiguousarray(x, dtype=F32).view(U32).astype(np.uint64)
    r = ((u + 0x7FFF + ((u >> 16) & 1)) >> 16).astype(U32) & 0xFFFF
    nan = np.isnan(x)
    if nan.any():
        r = np.where(nan, U32(0x7FC0), r)
    return r


def bf16_to_f32(u16):
    return (u16.astype(U32) << 16).view(F32)


FCONST = {"0.5": 0.5, "-0.5": -0.5, "1.0": 1.0, "-1.0": -1.0, "2.0": 2.0, "-2.0": -2.0, "4.0": 4.0, "-4.0": -4.0}
SPECIAL = {"vcc": 106, "vcc_lo": 106, "vcc_hi": 107, "m0": 124, "exec": 126, "exec_lo": 126, "exec_hi": 127}


class Op:
    __slots__ = ("kind", "idx", "n", "val", "neg", "abs")

    def __init__(self, t):
        t = t.strip()
        self.neg = self.abs = False
        self.n = 1
        self.val = None
        self.idx = None
        if t in FCONST:
            self.kind = "c"
            self.val = f2u(FCONST[t])
            return
        if t.startswith("-") and t[1:2] in "vsa|" and not t[1:2].isdigit():
            self.neg = True
            t = t[1:]
        if t.startswith("|"):
            self.abs = True
            t = t.strip("|")
        if t in SPECIAL:
            self.kind = "s"
            self.idx = SPECIAL[t]
            self.n = 2 if t in ("vcc", "exec") else 1
            return
        m = re.fullmatch(r"([vsa])(\d+)", t)
        if m:
            self.kind = m.group(1)
            self.idx = int(m.group(2))
        else:
            m = re.fullmatch(r"([vsa])\[(\d+):(\d+)\]", t)
            if m:
                self.kind = m.group(1)
                self.idx = int(m.group(2))
                self.n = int(m.group(3)) - self.idx + 1
            elif t == "off":
                self.kind = "off"
                return
            else:
                try:
                    self.val = int(t, 0) & 0xFFFFFFFFFFFFFFFF
                    self.kind = "c"
                except ValueError:
                    self.kind = "label"
                    self.val = t
                return
        if self.kind == "a":
            self.kind = "v"
            self.idx += 256

    def regs(self):
        if self.kind in ("v", "s"):
            return [(self.kind, self.idx + i) for i in range(self.n)]
        return []


TRANS = ("v_exp_f32", "v_log_f32", "v_rcp_f32", "v_rsq_f32", "v_sqrt_f32")


class Ins:
    __slots__ = ("text", "mn", "ops", "mods", "line", "cls", "defs", "uses", "vdefs", "vuses", "sdefs", "suses", "ws", "cuse", "abuse")

    def __init__(self, text, line):
        self.text = text
        self.line = line
        parts = text.split(None, 1)
        mn = parts[0]
        for suf in ("_e32", "_e64"):
            if mn.endswith(suf):
                mn = mn[:-4]
        self.mn = mn
        rest = parts[1] if len(parts) > 1 else ""
        self.mods = {}
        self.ops = []
        self.ws = 1
        if mn == "s_waitcnt":
            for k, v in re.findall(r"(vmcnt|lgkmcnt|expcnt)\((\d+)\)", rest):
                self.mods[k] = int(v)
        elif mn == "s_getreg_b32":
            self.ops = [Op(rest.split(",")[0])]
        else:
            toks = []
            depth = 0
            cur = ""
            for ch in rest:
                if ch == "[":
                    depth += 1
                if ch == "]":
                    depth -= 1
                if ch == "," and depth == 0:
                    toks.append(cur)
                    cur = ""
                else:
                    cur += ch
            if cur.strip():
                toks.append(cur)
            if toks:
                last = toks[-1].split()
                if mn in ("buffer_wbl2", "buffer_inv"):
                    toks = []
                    ms = last
                else:
                    toks[-1] = last[0]
                    ms = last[1:]
                for m in ms:
                    if ":" in m:
                        k, v = m.split(":", 1)
                        self.mods[k] = v if v.startswith("[") else int(v, 0)
                    else:
                        self.mods[m] = True
            self.ops = [Op(t) for t in toks]
        self.classify()

    def classify(self):
        mn, o = self.mn, self.ops
        defs, uses = [], []
        self.cuse = []
        self.abuse = []
        R = lambda i: o[i].regs()
        if mn.startswith("v_mfma") or mn.startswith("v_smfmac"):
            self.cls = "mfma"
            defs = R(0)
            self.abuse = [r[1] for r in R(1) + R(2)]
            if mn.startswith("v_smfmac"):
                self.abuse += [r[1] for r in R(3)]
                self.cuse = [r[1] for r in R(0)]
                uses = R(0) + R(1) + R(2) + R(3)
            else:
                self.cuse = [r[1] for r in R(3)]
                uses = R(1) + R(2) + R(3)
        elif mn.startswith("v_"):
            self.cls = "trans" if mn in TRANS else "valu"
            if mn.startswith("v_permlane"):
                defs = R(0) + R(1)
                uses = R(0) + R(1)
            elif mn.startswith("v_cmp"):
                defs = R(0)
                uses = R(1) + R(2)
            elif mn == "v_nop":
                pass
            else:
                defs = R(0)
                for i in range(1, len(o)):
                    uses += R(i)
                if mn in ("v_fmac_f32", "v_writelane_b32") or mn.endswith("_dpp"):
                    uses += R(0)
        elif mn.startswith("ds_"):
            self.cls = "ds"
            if "read" in mn or "swizzle" in mn or "bpermute" in mn:
                defs = R(0)
                for i in range(1, len(o)):
                    uses += R(i)
            else:
                for i in range(len(o)):
                    uses += R(i)
        elif mn.startswith("buffer_") or mn.startswith("global_"):
            self.cls = "vmem"
            if mn in ("buffer_wbl2", "buffer_inv"):
                pass
            elif "load" in mn and "lds" not in self.mods:
                defs = R(0)
                for i in range(1, len(o)):
                    uses += R(i)
            else:
                for i in range(len(o)):
                    uses += R(i)
                if "lds" in self.mods:
                    uses.append(("s", 124))
                if "atomic" in mn and "sc0" in self.mods:
                    defs = R(0)
        elif mn.startswith("s_load") or mn in ("s_memtime", "s_memrealtime"):
            self.cls = "smem"
            defs = R(0)
            if len(o) > 1:
                uses = R(1)
        else:
            self.cls = "salu"
            if mn == "s_nop":
                self.ws = o[0].val + 1
            elif mn.startswith("s_cmp") or mn.startswith("s_bitcmp"):
                uses = R(0) + R(1)
            elif mn.startswith("s_cbranch") or mn in ("s_branch", "s_barrier", "s_waitcnt", "s_endpgm", "s_setprio", "s_sleep"):
                pass
            else:
                defs = R(0)
                for i in range(1, len(o)):
                    uses += R(i)
                if mn in ("s_and_saveexec_b64", "s_or_saveexec_b64"):
                    defs += [("s", 126), ("s", 127)]
                if mn in ("s_addk_i32",):
                    uses += R(0)
        self.defs, self.uses = defs, uses
        self.vdefs = [r[1] for r in defs if r[0] == "v"]
        self.vuses = [r[1] for r in uses if r[0] == "v"]
        self.sdefs = [r[1] for r in defs if r[0] == "s"]
        self.suses = [r[1] for r in uses if r[0] == "s"]


def parse(asm):
    ins, labels = [], {}
    intext = False
    for ln, raw in enumerate(asm.split("\n"), 1):
        s = raw.split(";")[0].split("//")[0].strip()
        if not s:
            continue
        if s.startswith(".text"):
            intext = True
            continue
        if s.startswith(".section"):
            intext = False
            continue
        if not intext:
            continue
        if s.endswith(":"):
            labels[s[:-1]] = len(ins)
            continue
        if s.startswith("."):
            continue
        ins.append(Ins(s, ln))
    return ins, labels


class Mem:
    def __init__(self):
        self.bufs = []
        self.next = 0x7F0000000000

    def add(self, name, arr):
        arr = np.ascontiguousarray(arr).view(np.uint8).reshape(-1)
        base = self.next
        self.next += (len(arr) + 0xFFFFFFF) & ~0xFFFFFFF
        self.next += 0x10000000
        self.bufs.append((base, arr, name))
        return base

    def find(self, lo, hi):
        for base, arr, name in self.bufs:
            if base <= lo and hi <= base + len(arr):
                return base, arr, name
        raise SimError("global access outside any buffer: %x..%x" % (lo, hi))


class Wave:
    def __init__(self, wid):
        self.wid = wid
        self.v = np.zeros((512, 64), dtype=U32)
        self.v[:] = 0x7FC0DEAD
        self.s = [0xDEADBEEF] * 128
        self.s[126] = self.s[127] = 0xFFFFFFFF
        self.scc = 0
        self.pc = 0
        self.done = False
        self.t = 0
        self.vq = []
        self.lq = []
        self.pend = {}
        self.wr_valu = [-99] * 512
        self.wr_trans = [-99] * 512
        self.wr_mfma = [-99] * 512
        self.mfma_dtuple = {}
        self.rd_mfma_c = [-99] * 512
        self.st_data = [-99] * 512
        self.swr_valu = [-99] * 128
        self.m0_t = -99
        self.counts = {}


class Sim:
    def __init__(self, asm, mem=None, lds_bytes=163840, data=True, autowait=None, verbose=False):
        self.ins, self.labels = parse(asm)
        self.mem = mem
        self.data = data
        self.lds_bytes = lds_bytes
        self.autowait = autowait
        self.autonop = {}
        self.errors = {}
        self.info = {}
        self.verbose = verbose
        self.hook = None
        self.bank_done = set()

    def err(self, w, i, msg):
        k = (i.line, msg.split(":")[0])
        if k not in self.errors:
            self.errors[k] = "line %d wave %d: %s  || %s" % (i.line, w.wid, msg, i.text)

    def rd(self, w, o, k=0):
        if o.kind == "v":
            x = w.v[o.idx + k]
        elif o.kind == "s":
            x = np.full(64, w.s[o.idx + k], dtype=U32)
        else:
            x = np.full(64, o.val & 0xFFFFFFFF, dtype=U32)
        return x

    def rdf(self, w, o, k=0):
        x = self.rd(w, o, k).view(F32)
        if o.abs:
            x = np.abs(x)
        if o.neg:
            x = -x
        return x

    def srd(self, w, o, k=0):
        if o.kind == "s":
            return w.s[o.idx + k]
        if o.kind == "c":
            return (o.val >> (32 * k)) & 0xFFFFFFFF
        if o.kind == "label":
            return 0
        raise SimError("bad scalar operand")

    def s64(self, w, o):
        return self.srd(w, o, 0) | (self.srd(w, o, 1) << 32)

    def execmask(self, w):
        e = w.s[126] | (w.s[127] << 32)
        if e == 0xFFFFFFFFFFFFFFFF:
            return None
        return np.array([(e >> i) & 1 for i in range(64)], dtype=bool)

    def wr(self, w, o, x, k=0):
        x = np.asarray(x)
        if x.dtype == F32:
            x = x.view(U32)
        elif x.dtype != U32:
            x = (x.astype(np.int64) & 0xFFFFFFFF).astype(U32)
        m = self.execmask(w)
        if m is None:
            w.v[o.idx + k] = x
        else:
            w.v[o.idx + k] = np.where(m, x, w.v[o.idx + k])

    def wmask(self, w, o, b):
        m = self.execmask(w)
        if m is not None:
            b = b & m
        e = 0
        for i in np.nonzero(b)[0]:
            e |= 1 << int(i)
        w.s[o.idx] = e & 0xFFFFFFFF
        w.s[o.idx + 1] = e >> 32

    def rmask(self, w, o):
        e = w.s[o.idx] | (w.s[o.idx + 1] << 32)
        return np.array([(e >> i) & 1 for i in range(64)], dtype=bool)

    def retire(self, w, q, n):
        while len(q) > n:
            oid, regs = q.pop(0)
            self.done_epoch[oid] = self.epoch
            for r in regs:
                if w.pend.get(r, (None, None))[1] == oid:
                    del w.pend[r]

    def newop(self, w, kind, regs):
        oid = len(self.done_epoch)
        self.done_epoch.append(1 << 30)
        self.op_wave.append(w.wid)
        self.op_isds.append(kind == "lg")
        q = w.vq if kind == "vm" else w.lq
        q.append((oid, regs))
        for r in regs:
            w.pend[r] = (kind, oid)
        if kind == "vm" and len(q) > 63:
            self.retire(w, q, 63)
            self.info["vmcnt>63"] = self.info.get("vmcnt>63", 0) + 1
        return oid

    def check_pending(self, w, i, ii):
        if self.autowait is not None and ii in self.autowait:
            aw = self.autowait[ii]
            if "vmcnt" in aw:
                self.retire(w, w.vq, aw["vmcnt"])
            if "lgkmcnt" in aw:
                self.retire(w, w.lq, aw["lgkmcnt"])
            w.t += 1
        if not w.pend:
            return
        for r in i.uses + i.defs:
            p = w.pend.get(r)
            if p is None:
                continue
            kind, oid = p
            q = w.vq if kind == "vm" else w.lq
            if r in i.defs and r not in i.uses and ((kind == "lg" and i.cls == "ds") or (kind == "vm" and i.cls == "vmem")):
                continue
            pos = [x[0] for x in q].index(oid)
            n = len(q) - 1 - pos
            if kind == "lg":
                if self.op_smem.get(oid):
                    n = 0
                else:
                    n -= sum(1 for x in q[pos:] if self.op_smem.get(x[0]))
                n = min(n, 15)
            if self.autowait is not None:
                aw = self.autowait.setdefault(ii, {})
                key = "vmcnt" if kind == "vm" else "lgkmcnt"
                aw[key] = min(aw.get(key, 99), n)
            else:
                self.err(w, i, "missing waitcnt: %s%d needs %s(%d)" % (r[0], r[1], kind, n))
            self.retire(w, q, n)

    def hazards(self, w, i, ii):
        have = self.autonop.get(ii, 0)
        w.t += have
        t = w.t
        cls = i.cls

        def need(arr, regs, n, what):
            for r in regs:
                d = t - arr[r] - 1
                if d < n:
                    if self.autowait is not None:
                        self.autonop[ii] = max(self.autonop.get(ii, 0), have + n - d)
                    else:
                        self.err(w, i, "hazard %s: reg %d distance %d < %d" % (what, r, d, n))
                        return

        if cls == "mfma":
            need(w.wr_valu, i.vuses, 2, "valu->mfma")
            need(w.wr_mfma, i.abuse, 8, "mfmaD->mfmaAB")
            if i.cuse:
                tup = (i.cuse[0], len(i.cuse), i.mn)
                for r in i.cuse:
                    if t - w.wr_mfma[r] - 1 < 6 and w.mfma_dtuple.get(r) != tup:
                        self.err(w, i, "hazard mfmaD->mfmaC overlap: reg %d" % r)
            if i.vdefs[0] not in i.cuse:
                need(w.wr_mfma, i.vdefs, 6, "mfmaD->mfmaD waw")
        elif cls in ("valu", "trans"):
            need(w.wr_mfma, i.vuses + i.vdefs, 8, "mfmaD->valu")
            need(w.rd_mfma_c, i.vdefs, 3, "mfmaC war valu")
            need(w.st_data, i.vdefs, 2, "store data war")
            if cls == "valu":
                need(w.wr_trans, i.vuses, 1, "trans->valu")
            if i.mn.startswith("v_permlane") or i.mn.endswith("_dpp"):
                need(w.wr_valu, i.vuses, 2, "valu->permlane/dpp")
            if i.mn in ("v_readfirstlane_b32", "v_readlane_b32"):
                need(w.wr_valu, i.vuses, 1, "valu->readlane")
            need(w.swr_valu, i.suses, 2, "valu sgpr->valu")
        elif cls in ("ds", "vmem"):
            need(w.wr_mfma, i.vuses + i.vdefs, 8, "mfmaD->mem")
            need(w.wr_trans, i.vuses, 1, "trans->mem")
            need(w.st_data, i.vdefs, 1, "store data war")
            if cls == "vmem":
                need(w.swr_valu, i.suses, 5, "valu sgpr->vmem")
                if "lds" in i.mods and t - w.m0_t - 1 < 1:
                    self.err(w, i, "hazard m0->dma")
        elif cls == "salu":
            need(w.swr_valu, i.suses, 1, "valu sgpr->salu")
        if cls == "mfma":
            tup = (i.vdefs[0], len(i.vdefs), i.mn)
            for r in i.vdefs:
                w.wr_mfma[r] = t
                w.mfma_dtuple[r] = tup
            for r in i.cuse:
                w.rd_mfma_c[r] = t
        elif cls in ("valu", "trans"):
            for r in i.vdefs:
                w.wr_valu[r] = t
                if cls == "trans":
                    w.wr_trans[r] = t
            for r in i.sdefs:
                w.swr_valu[r] = t
        elif cls == "vmem" and "store" in i.mn and (i.mn.endswith("x4") or i.mn.endswith("x3")):
            for r in i.ops[0].regs():
                w.st_data[r[1]] = t
        elif cls == "salu" and 124 in i.sdefs:
            w.m0_t = t
        w.t += i.ws

    def lds_access(self, w, i, addrs, nbytes, oid, write, dma=False):
        m = self.execmask(w)
        if m is not None:
            addrs = addrs[m]
        if len(addrs) == 0:
            return None
        if int(addrs.max()) + nbytes > self.lds_bytes:
            self.err(w, i, "LDS out of range: %d" % int(addrs.max()))
            raise SimError("LDS OOR line %d" % i.line)
        if (addrs % min(nbytes, 16)).any():
            self.err(w, i, "LDS misaligned")
        g = ((addrs[:, None] >> 2) + np.arange(nbytes // 4)[None, :]).reshape(-1)
        de = self.done_epoch
        for o in np.unique(self.lw[g]):
            if o < 0:
                if not write:
                    self.info["lds uninit read line %d" % i.line] = 1
                continue
            if self.op_wave[o] == w.wid:
                if self.op_isds[o] and not dma:
                    continue
                if de[o] > self.epoch:
                    self.err(w, i, "LDS race own-wave %s: earlier write not waited" % ("WAW" if write else "RAW"))
            elif de[o] >= self.epoch:
                self.err(w, i, "LDS race %s: write by wave %d not complete before barrier" % ("WAW" if write else "RAW", self.op_wave[o]))
        if write:
            for ow in range(self.nw):
                for o in np.unique(self.lr[ow][g]):
                    if o < 0:
                        continue
                    if ow == w.wid:
                        if dma and de[o] > self.epoch:
                            self.err(w, i, "LDS race own-wave WAR: read not waited")
                    elif de[o] >= self.epoch:
                        self.err(w, i, "LDS race WAR: read by wave %d not complete before barrier" % ow)
            self.lw[g] = oid
        else:
            self.lr[w.wid][g] = oid
        return g

    def bank_check(self, i, addrs, kind):
        if kind == "b128":
            groups = [[0, 1, 2, 3, 12, 13, 14, 15, 20, 21, 22, 23, 24, 25, 26, 27], [4, 5, 6, 7, 8, 9, 10, 11, 16, 17, 18, 19, 28, 29, 30, 31]]
            groups += [[x + 32 for x in g] for g in groups]
            n = 4
        else:
            groups = [list(range(32)), list(range(32, 64))]
            n = 2
        for g in groups:
            a = np.unique(addrs[g])
            b = (((a[:, None] >> 2) + np.arange(n)[None, :]) & 63).reshape(-1)
            c = np.bincount(b.astype(np.int64), minlength=64).max()
            if c > 1:
                self.info["bank conflict x%d line %d %s" % (c, i.line, i.mn)] = 1
                return

    def buf_addr(self, w, i, vo, srd, so, nbytes):
        base = w.s[srd.idx] | ((w.s[srd.idx + 1] & 0xFFFF) << 32)
        nrec = w.s[srd.idx + 2]
        if w.s[srd.idx + 3] != 0x20000:
            self.err(w, i, "bad SRD word3")
        off = np.full(64, self.srd(w, so) + i.mods.get("offset", 0), dtype=np.int64)
        if "offen" in i.mods:
            off += w.v[vo.idx].astype(np.int64)
        ok = off + nbytes <= nrec
        m = self.execmask(w)
        if m is not None:
            act = m
        else:
            act = np.ones(64, dtype=bool)
        if (act & ~ok).any():
            self.info["SRD range drop line %d" % i.line] = 1
        ok &= act
        if (off[ok] % min(nbytes, 4)).any():
            self.err(w, i, "global misaligned")
        return base, off, ok, act

    def gload(self, base, off, ok, nbytes):
        out = np.zeros((64, nbytes), dtype=np.uint8)
        if ok.any():
            lo = base + int(off[ok].min())
            hi = base + int(off[ok].max()) + nbytes
            b, arr, name = self.mem.find(lo, hi)
            if self.data:
                idx = (base - b + off[ok])[:, None] + np.arange(nbytes)[None, :]
                out[ok] = arr[idx]
        return out.view(U32)

    def gstore(self, base, off, ok, data):
        nbytes = data.shape[1] * 4
        if ok.any():
            lo = base + int(off[ok].min())
            hi = base + int(off[ok].max()) + nbytes
            b, arr, name = self.mem.find(lo, hi)
            if name.startswith("in"):
                raise SimError("store to input " + name)
            if self.data:
                idx = (base - b + off[ok])[:, None] + np.arange(nbytes)[None, :]
                arr[idx] = np.ascontiguousarray(data[ok]).view(np.uint8).reshape(-1, nbytes)

    def frag(self, w, o):
        x = w.v[o.idx:o.idx + o.n]
        lo = (x << 16).view(F32)
        hi = (x & 0xFFFF0000).view(F32)
        e = np.stack([lo, hi], axis=1).reshape(2 * o.n, 64)
        return e.reshape(2 * o.n, 4, 16).transpose(2, 1, 0).reshape(16, 8 * o.n)

    def step(self, w):
        ii = w.pc
        i = self.ins[ii]
        self.check_pending(w, i, ii)
        self.hazards(w, i, ii)
        w.counts[i.cls] = w.counts.get(i.cls, 0) + 1
        w.pc += 1
        mn, o = i.mn, i.ops
        cls = i.cls
        if cls == "mfma":
            if not self.data:
                return
            if mn == "v_smfmac_f32_16x16x64_bf16":
                Ac = self.frag(w, o[1]).reshape(16, 4, 8)
                Bf = self.frag(w, o[2]).reshape(16, 4, 2, 8).transpose(0, 2, 1, 3).reshape(16, 64)
                idx = w.v[o[3].idx].reshape(4, 16).T.astype(np.int64)
                e = np.arange(8)
                kk = 16 * np.arange(4)[None, :, None] + 4 * (e >> 1)[None, None, :] + ((idx[:, :, None] >> (2 * e)[None, None, :]) & 3)
                with np.errstate(all="ignore"):
                    D = np.einsum("mge,nmge->mn", Ac, Bf[:, kk])
                    D = D.reshape(4, 4, 16).transpose(1, 0, 2).reshape(4, 64) + w.v[o[0].idx:o[0].idx + 4].view(F32)
                w.v[o[0].idx:o[0].idx + 4] = D.astype(F32).view(U32)
                return
            if mn != "v_mfma_f32_16x16x32_bf16":
                raise SimError("unsupported " + mn)
            A = self.frag(w, o[1])
            B = self.frag(w, o[2])
            with np.errstate(all="ignore"):
                D = A @ B.T
                D = D.reshape(4, 4, 16).transpose(1, 0, 2).reshape(4, 64)
                if o[3].kind == "v":
                    D = D + w.v[o[3].idx:o[3].idx + 4].view(F32)
                elif o[3].val != 0:
                    raise SimError("const C")
            w.v[o[0].idx:o[0].idx + 4] = D.astype(F32).view(U32)
            return
        if cls in ("valu", "trans"):
            self.valu(w, i)
            return
        if cls == "ds":
            self.dsop(w, i)
            return
        if cls == "vmem":
            self.vmem(w, i)
            return
        if cls == "smem":
            oid = self.newop(w, "lg", i.defs if mn != "s_memtime" else [])
            self.op_smem[oid] = True
            if mn.startswith("s_load"):
                a = self.s64(w, o[1]) + o[2].val
                b, arr, _ = self.mem.find(a, a + 4 * o[0].n)
                vals = arr[a - b:a - b + 4 * o[0].n].view(U32)
                for k in range(o[0].n):
                    w.s[o[0].idx + k] = int(vals[k])
            else:
                w.s[o[0].idx] = w.t & 0xFFFFFFFF
                w.s[o[0].idx + 1] = 0
            return
        return self.salu(w, i)

    def salu(self, w, i):
        mn, o = i.mn, i.ops
        S = lambda k: self.srd(w, o[k])
        M = 0xFFFFFFFF
        sg = lambda x: x - (1 << 32) if x >> 31 else x

        def st(x, scc=None):
            w.s[o[0].idx] = x & M
            if scc is not None:
                w.scc = int(scc)

        if mn == "s_waitcnt":
            if "vmcnt" in i.mods:
                self.retire(w, w.vq, i.mods["vmcnt"])
            if "lgkmcnt" in i.mods:
                n = i.mods["lgkmcnt"]
                if n == 0 or not any(self.op_smem.get(x[0]) for x in w.lq):
                    self.retire(w, w.lq, n)
                else:
                    sm = [x for x in w.lq if self.op_smem.get(x[0])]
                    w.lq[:] = [x for x in w.lq if not self.op_smem.get(x[0])]
                    self.retire(w, w.lq, n)
                    w.lq[:0] = sm
        elif mn == "s_barrier":
            return "barrier"
        elif mn == "s_endpgm":
            self.retire(w, w.vq, 0)
            self.retire(w, w.lq, 0)
            w.done = True
            return "end"
        elif mn in ("s_nop", "s_setprio", "s_sleep"):
            pass
        elif mn == "s_mov_b32":
            st(S(1))
        elif mn == "s_movk_i32":
            st(S(1))
        elif mn == "s_getreg_b32":
            st(w.wid & 1)
        elif mn == "s_getpc_b64":
            w.s[o[0].idx], w.s[o[0].idx + 1] = 0x1000, 0x7E
        elif mn == "s_mov_b64":
            a, b = self.srd(w, o[1], 0), self.srd(w, o[1], 1)
            w.s[o[0].idx], w.s[o[0].idx + 1] = a, b
        elif mn == "s_add_u32":
            x = S(1) + S(2)
            st(x, x >> 32)
        elif mn == "s_addc_u32":
            x = S(1) + S(2) + w.scc
            st(x, x >> 32)
        elif mn == "s_sub_u32":
            x = S(1) - S(2)
            st(x, x < 0)
        elif mn == "s_subb_u32":
            x = S(1) - S(2) - w.scc
            st(x, x < 0)
        elif mn == "s_add_i32":
            st(S(1) + S(2), 0)
        elif mn == "s_sub_i32":
            st(S(1) - S(2), 0)
        elif mn == "s_mul_i32":
            st(S(1) * S(2))
        elif mn == "s_lshl_b32":
            x = (S(1) << (S(2) & 31)) & M
            st(x, x != 0)
        elif mn == "s_lshr_b32":
            x = S(1) >> (S(2) & 31)
            st(x, x != 0)
        elif mn == "s_and_b32":
            x = S(1) & S(2)
            st(x, x != 0)
        elif mn == "s_or_b32":
            x = S(1) | S(2)
            st(x, x != 0)
        elif mn == "s_xor_b32":
            x = S(1) ^ S(2)
            st(x, x != 0)
        elif mn == "s_min_u32":
            st(min(S(1), S(2)), S(1) < S(2))
        elif mn == "s_max_u32":
            st(max(S(1), S(2)), S(1) > S(2))
        elif mn == "s_max_i32":
            st(max(sg(S(1)), sg(S(2))), sg(S(1)) > sg(S(2)))
        elif mn == "s_bfe_u32":
            x = (S(1) >> (S(2) & 31)) & ((1 << ((S(2) >> 16) & 0x7F)) - 1)
            st(x, x != 0)
        elif mn == "s_cselect_b32":
            st(S(1) if w.scc else S(2))
        elif mn in ("s_or_b64", "s_and_b64", "s_andn2_b64", "s_xor_b64"):
            a, b = self.s64(w, o[1]), self.s64(w, o[2])
            x = {"s_or_b64": a | b, "s_and_b64": a & b, "s_andn2_b64": a & ~b, "s_xor_b64": a ^ b}[mn]
            w.s[o[0].idx], w.s[o[0].idx + 1] = x & M, (x >> 32) & M
            w.scc = int(x != 0)
        elif mn == "s_and_saveexec_b64":
            e = w.s[126] | (w.s[127] << 32)
            x = e & self.s64(w, o[1])
            w.s[o[0].idx], w.s[o[0].idx + 1] = e & M, e >> 32
            w.s[126], w.s[127] = x & M, x >> 32
            w.scc = int(x != 0)
        elif mn.startswith("s_cmp_"):
            c, ty = mn.split("_")[2:4]
            if ty == "u64":
                a, b = self.s64(w, o[0]), self.s64(w, o[1])
            else:
                a, b = S(0), S(1)
            if ty == "i32":
                a, b = sg(a), sg(b)
            w.scc = int({"eq": a == b, "lg": a != b, "lt": a < b, "le": a <= b, "gt": a > b, "ge": a >= b}[c])
        elif mn == "s_bitcmp1_b32":
            w.scc = (S(0) >> (S(1) & 31)) & 1
        elif mn == "s_bitcmp0_b32":
            w.scc = 1 - ((S(0) >> (S(1) & 31)) & 1)
        elif mn == "s_branch":
            w.pc = self.labels[o[0].val]
        elif mn.startswith("s_cbranch"):
            c = mn[10:]
            vcc = w.s[106] | w.s[107]
            ex = w.s[126] | w.s[127]
            if c in ("vccz", "vccnz") and w.t - 1 - max(w.swr_valu[106], w.swr_valu[107]) - 1 < 1:
                pass
            if {"scc0": not w.scc, "scc1": w.scc, "vccz": not vcc, "vccnz": vcc, "execz": not ex, "execnz": ex}[c]:
                w.pc = self.labels[o[0].val]
        else:
            raise SimError("unsupported salu " + i.text)

    def valu(self, w, i):
        mn, o = i.mn, i.ops
        R = lambda k: self.rd(w, o[k])
        L = lambda k: self.rd(w, o[k]).astype(np.int64)
        Fv = lambda k: self.rdf(w, o[k])
        W = lambda x: self.wr(w, o[0], x)
        with np.errstate(all="ignore"):
            if mn in ("v_mov_b32", "v_accvgpr_read_b32", "v_accvgpr_write_b32", "v_accvgpr_mov_b32"):
                W(R(1).copy())
            elif mn == "v_nop":
                pass
            elif mn == "v_mov_b64":
                assert o[1].kind == "c" and o[1].val == 0
                self.wr(w, o[0], np.zeros(64, dtype=U32), 0)
                self.wr(w, o[0], np.zeros(64, dtype=U32), 1)
            elif mn == "v_exp_f32":
                if self.data:
                    W(np.exp2(Fv(1)).astype(F32))
            elif mn == "v_cvt_pk_bf16_f32":
                if self.data:
                    W(bf16_round(Fv(1)) | (bf16_round(Fv(2)) << 16))
            elif mn == "v_add_u32":
                W(L(1) + L(2))
            elif mn in ("v_add_co_u32", "v_addc_co_u32"):
                W(L(2) + L(3))
            elif mn == "v_sub_u32":
                W(L(1) - L(2))
            elif mn == "v_subrev_u32":
                W(L(2) - L(1))
            elif mn == "v_lshlrev_b32":
                W(L(2) << (L(1) & 31))
            elif mn == "v_lshrrev_b32":
                W(L(2) >> (L(1) & 31))
            elif mn == "v_and_b32":
                W(R(1) & R(2))
            elif mn == "v_or_b32":
                W(R(1) | R(2))
            elif mn == "v_xor_b32":
                W(R(1) ^ R(2))
            elif mn == "v_lshl_add_u32":
                W((L(1) << (L(2) & 31)) + L(3))
            elif mn == "v_lshl_or_b32":
                W((L(1) << (L(2) & 31)) | L(3))
            elif mn == "v_add_lshl_u32":
                W(((L(1) + L(2)) & 0xFFFFFFFF) << (L(3) & 31))
            elif mn == "v_and_or_b32":
                W((R(1) & R(2)) | R(3))
            elif mn == "v_add3_u32":
                W(L(1) + L(2) + L(3))
            elif mn == "v_or3_b32":
                W(R(1) | R(2) | R(3))
            elif mn == "v_mul_u32_u24":
                W((L(1) & 0xFFFFFF) * (L(2) & 0xFFFFFF))
            elif mn == "v_mad_u32_u24":
                W((L(1) & 0xFFFFFF) * (L(2) & 0xFFFFFF) + L(3))
            elif mn == "v_mul_lo_u32":
                W((R(1).astype(np.uint64) * R(2).astype(np.uint64)).astype(U32))
            elif mn == "v_bfe_u32":
                W((L(1) >> (L(2) & 31)) & ((1 << (L(3) & 31)) - 1))
            elif mn == "v_min_u32":
                W(np.minimum(L(1), L(2)))
            elif mn == "v_max3_u32":
                W(np.maximum(np.maximum(L(1), L(2)), L(3)))
            elif mn == "v_max_u32":
                W(np.maximum(L(1), L(2)))
            elif mn == "v_readfirstlane_b32":
                m = self.execmask(w)
                l = 0 if m is None or not m.any() else int(np.nonzero(m)[0][0])
                w.s[o[0].idx] = int(R(1)[l])
            elif mn == "v_readlane_b32":
                w.s[o[0].idx] = int(R(1)[self.srd(w, o[2]) & 63])
            elif mn == "v_writelane_b32":
                w.v[o[0].idx][self.srd(w, o[2]) & 63] = self.srd(w, o[1])
            elif mn == "v_cndmask_b32":
                W(np.where(self.rmask(w, o[3]), R(2), R(1)))
            elif mn.startswith("v_cmp_"):
                c, ty = mn.split("_")[2:4]
                if ty == "f32":
                    a, b = Fv(1), Fv(2)
                elif ty == "i32":
                    a, b = R(1).view(np.int32), R(2).view(np.int32)
                else:
                    a, b = R(1), R(2)
                r = {"eq": a == b, "ne": a != b, "lt": a < b, "le": a <= b, "gt": a > b, "ge": a >= b,
                     "nle": ~(a <= b), "nge": ~(a >= b), "nlt": ~(a < b), "ngt": ~(a > b), "neq": ~(a == b)}[c]
                if not self.data and ty == "f32":
                    r = np.full(64, bool(self.force_fcmp))
                self.wmask(w, o[0], r)
            elif mn == "v_add_f32":
                W(Fv(1) + Fv(2))
            elif mn == "v_sub_f32":
                W(Fv(1) - Fv(2))
            elif mn == "v_subrev_f32":
                W(Fv(2) - Fv(1))
            elif mn == "v_mul_f32":
                W(Fv(1) * Fv(2))
            elif mn == "v_fma_f32":
                W((Fv(1).astype(np.float64) * Fv(2) + Fv(3)).astype(F32))
            elif mn == "v_fmac_f32":
                W((Fv(1).astype(np.float64) * Fv(2) + Fv(0)).astype(F32))
            elif mn == "v_max_f32":
                W(np.fmax(Fv(1), Fv(2)))
            elif mn == "v_min_f32":
                W(np.fmin(Fv(1), Fv(2)))
            elif mn == "v_max3_f32":
                W(np.fmax(np.fmax(Fv(1), Fv(2)), Fv(3)))
            elif mn == "v_rcp_f32":
                W((F32(1) / Fv(1)).astype(F32))
            elif mn in ("v_pk_mul_f32", "v_pk_add_f32", "v_pk_fma_f32"):
                ns = 3 if mn == "v_pk_fma_f32" else 2
                sel = eval(i.mods.get("op_sel", "[0,0,0]"))
                selh = eval(i.mods.get("op_sel_hi", "[1,1,1]"))
                res = []
                for s_ in (sel, selh):
                    x = [self.rdf(w, o[k + 1], s_[k] if o[k + 1].kind != "c" else 0) for k in range(ns)]
                    if mn == "v_pk_mul_f32":
                        res.append(x[0] * x[1])
                    elif mn == "v_pk_add_f32":
                        res.append(x[0] + x[1])
                    else:
                        res.append((x[0].astype(np.float64) * x[1] + x[2]).astype(F32))
                self.wr(w, o[0], res[0], 0)
                self.wr(w, o[0], res[1], 1)
            elif mn == "v_permlane32_swap_b32":
                a, b = w.v[o[0].idx], w.v[o[1].idx]
                t = a[32:].copy()
                a[32:] = b[:32]
                b[:32] = t
            elif mn == "v_permlane16_swap_b32":
                a, b = w.v[o[0].idx], w.v[o[1].idx]
                for r in (0, 32):
                    t = a[r + 16:r + 32].copy()
                    a[r + 16:r + 32] = b[r:r + 16]
                    b[r:r + 16] = t
            elif mn in ("v_add_f32_dpp", "v_max_f32_dpp", "v_mov_b32_dpp"):
                src = R(1)
                if "row_ror" in i.mods:
                    n = i.mods["row_ror"]
                    idx = (LANES & 48) | ((LANES + 16 - n) & 15)
                elif "quad_perm" in i.mods:
                    p = np.array(eval(i.mods["quad_perm"]), dtype=U32)
                    idx = (LANES & 60) | p[LANES & 3]
                else:
                    raise SimError("dpp mode")
                src = src[idx]
                if mn == "v_mov_b32_dpp":
                    W(src)
                elif mn == "v_add_f32_dpp":
                    W(src.view(F32) + Fv(2))
                else:
                    W(np.fmax(src.view(F32), Fv(2)))
            else:
                raise SimError("unsupported valu " + i.text)

    def dsop(self, w, i):
        mn, o = i.mn, i.ops
        off = i.mods.get("offset", 0)
        lds32 = self.lds.view(U32)
        m = self.execmask(w)
        if mn.startswith("ds_read"):
            n = o[0].n
            addrs = w.v[o[1].idx].astype(np.int64) + off
            oid = self.newop(w, "lg", i.defs)
            g = self.lds_access(w, i, addrs, 4 * n, oid, False)
            if m is None and n >= 2 and i.line not in self.bank_done:
                self.bank_done.add(i.line)
                self.bank_check(i, addrs, "b128" if n == 4 else "b64")
            if not self.data and not (mn == "ds_read_b32"):
                return
            if mn == "ds_read_b64_tr_b16":
                if m is not None:
                    self.err(w, i, "tr read with partial exec")
                d = lds32[g].reshape(64, 2).copy().view(np.uint16).reshape(4, 4, 4, 4)
                t = d.transpose(0, 2, 3, 1).reshape(64, 4)
                t = np.ascontiguousarray(t).view(U32)
                w.v[o[0].idx] = t[:, 0]
                w.v[o[0].idx + 1] = t[:, 1]
            elif g is not None:
                d = lds32[g].reshape(-1, n)
                for k in range(n):
                    if m is None:
                        w.v[o[0].idx + k] = d[:, k]
                    else:
                        w.v[o[0].idx + k][m] = d[:, k]
        elif mn.startswith("ds_write"):
            n = o[1].n
            addrs = w.v[o[0].idx].astype(np.int64) + off
            oid = self.newop(w, "lg", [])
            g = self.lds_access(w, i, addrs, 4 * n, oid, True)
            if g is not None:
                d = w.v[o[1].idx:o[1].idx + n].T
                if m is not None:
                    d = d[m]
                lds32[g] = d.reshape(-1)
        else:
            raise SimError("unsupported ds " + i.text)

    def vmem(self, w, i):
        mn, o = i.mn, i.ops
        if mn in ("buffer_wbl2", "buffer_inv"):
            self.newop(w, "vm", [])
            return
        if mn == "global_load_dword":
            self.newop(w, "vm", i.defs)
            return
        n = {"dword": 1, "dwordx2": 2, "dwordx4": 4, "add": 1}[mn.split("_")[-1]]
        if "lds" in i.mods:
            base, off, ok, act = self.buf_addr(w, i, o[0], o[1], o[2], 4 * n)
            d = self.gload(base, off, ok, 4 * n)
            oid = self.newop(w, "vm", [])
            addrs = (w.s[124] & 0x3FFFC) + i.mods.get("offset", 0) + LANES.astype(np.int64) * (4 * n)
            g = self.lds_access(w, i, addrs, 4 * n, oid, True, dma=True)
            if g is not None and self.data:
                self.lds.view(U32)[g] = d[act].reshape(-1)
        elif "load" in mn:
            base, off, ok, act = self.buf_addr(w, i, o[1], o[2], o[3], 4 * n)
            sv = self.data
            if n == 1:
                self.data = True
            d = self.gload(base, off, ok, 4 * n)
            self.data = sv
            self.newop(w, "vm", i.defs)
            for k in range(n):
                self.wr(w, o[0], d[:, k].copy(), k)
        elif "store" in mn:
            base, off, ok, act = self.buf_addr(w, i, o[1], o[2], o[3], 4 * n)
            self.gstore(base, off, ok, w.v[o[0].idx:o[0].idx + n].T)
            if self.hook:
                self.hook(w, i, base, off)
            self.newop(w, "vm", [])
        elif "atomic_add" in mn:
            base, off, ok, act = self.buf_addr(w, i, o[1], o[2], o[3], 4)
            old = np.zeros(64, dtype=U32)
            for l in np.nonzero(ok)[0]:
                a = base + int(off[l])
                b, arr, _ = self.mem.find(a, a + 4)
                x = arr[a - b:a - b + 4].view(U32)
                old[l] = x[0]
                x[0] = (int(x[0]) + int(w.v[o[0].idx][l])) & 0xFFFFFFFF
            self.newop(w, "vm", i.defs)
            if i.defs:
                self.wr(w, o[0], old)
        else:
            raise SimError("unsupported vmem " + i.text)

    def run_wg(self, label, wg, kernarg_addr, nw=4, force_fcmp=False, maxsteps=3000000):
        self.nw = nw
        self.force_fcmp = force_fcmp
        self.lds = np.zeros(self.lds_bytes, dtype=np.uint8)
        self.lds.view(U32)[:] = 0x7FC0BEEF
        self.lw = np.full(self.lds_bytes // 4, -1, dtype=np.int64)
        self.lr = [np.full(self.lds_bytes // 4, -1, dtype=np.int64) for _ in range(nw)]
        self.done_epoch, self.op_wave, self.op_isds, self.op_smem = [], [], [], {}
        self.epoch = 0
        waves = []
        for k in range(nw):
            w = Wave(k)
            w.pc = self.labels[label]
            w.s[0], w.s[1], w.s[2] = kernarg_addr & 0xFFFFFFFF, kernarg_addr >> 32, wg
            w.v[0] = LANES + 64 * k
            waves.append(w)
        self.waves = waves
        steps = 0
        while True:
            res = []
            for w in waves:
                if w.done:
                    continue
                while True:
                    steps += 1
                    if steps > maxsteps:
                        raise SimError("too many steps (hang?) at line %d" % self.ins[w.pc].line)
                    r = self.step(w)
                    if r:
                        res.append(r)
                        break
            if all(w.done for w in waves):
                break
            if "end" in res and "barrier" in res:
                raise SimError("barrier count mismatch between waves")
            self.epoch += 1
        return waves

    def report(self):
        for k in sorted(self.errors):
            print("ERROR", self.errors[k])
        for k in sorted(self.info):
            print("info:", k)
        return len(self.errors)
```

```python
import sys, time, numpy as np
import sim, gen, ref
asm = open(sys.argv[1]).read()
opts = sys.argv[2:]
for a in opts:
    if '=' in a: gen.OPT[a.split('=')[0]] = int(a.split('=')[1])
qs = 40.0 if "big" in opts else 1.0
js = [int(a) for a in opts if a.isdigit()] or [0, 1, 6, 7]
d = ref.make_inputs(0, qs)
mem = sim.Mem(); ptr = {}
ws = np.full((gen.WS_DIAG + 0x100000) // 2, 0x7fc1, dtype=np.uint16)
out = np.full(2048 * 1024, 0x7fc1, dtype=np.uint16)
dbg = np.zeros(64, dtype=np.uint32)
for n in gen.KARG:
    if n == "ws": ptr[n] = mem.add("ws", ws)
    elif n == "out": ptr[n] = mem.add("out", out)
    elif n == "dbg": ptr[n] = mem.add("dbg", dbg)
    else: ptr[n] = mem.add("in_" + n, ref.bits(d[n]))
ka = np.zeros(13, dtype=np.uint64)
for n in gen.KARG: ka[gen.KARG[n] // 8] = ptr[n]
kaddr = mem.add("karg", ka)
s = sim.Sim(asm, mem)
def cmp(name, got, exp):
    err = np.abs(got - exp); den = np.abs(exp).max()
    rl = np.sqrt(np.nansum(err**2) / (exp**2).sum())
    print("%s %s: max err %.4g (max ref %.4g) rel_l2 %.3g nan %d" % ("ok " if rl < 5e-3 and not np.isnan(got).any() else "BAD", name, np.nanmax(err) if not np.isnan(err).all() else np.nan, den, rl, np.isnan(got).sum()))
cw = ws[gen.WS_CTX // 2:gen.WS_CTX // 2 + 16 * gen.CTX_RB // 2].reshape(16, gen.CTX_RB // 2)[:, :160 * 4096].reshape(16, 160, 8, 64, 8)
assert np.shares_memory(cw, ws)
gw = ws[gen.WS_G // 2:gen.WS_G // 2 + 4096].view(np.float32)
r = np.random.default_rng(1)
g = ref.gate(d)
xw = ws[gen.WS_XCH // 2:gen.WS_XCH // 2 + 256 * 8192].reshape(256, 8192)
fake = ref.bits(r.standard_normal(8192, dtype=np.float32))
hxw = ws[gen.WS_HX // 2:gen.WS_HX // 2 + 32 * 16 * 1024].reshape(32, 16, 2, 64, 8)
def hx_ref(blk):
    r0 = (128 * blk - 16) % 2048
    k, v = [ref.rb(d["x"][r0:r0 + 16] @ d["wqkv"][:, 1024 * i + 32 * h:1024 * i + 32 * h + 32]) for i in (1, 2)]
    e = np.arange(8)
    return np.stack([k[ref.LR[:, None], ref.PERM], v[4 * ref.G4[:, None] + (e & 3)[None, :], 16 * (e >> 2)[None, :] + ref.LR[:, None]]])
def hook(w, i, base, off):
    o = int(off[0]) - gen.WS_HX
    if base == ptr["ws"] and 0 <= o < 1 << 20 and i.ops[0].idx < 256:
        for blk in (j, 15 - j):
            if blk not in (0, 8) and (hxw[h, blk] == 0xffff).all():
                hxw[h, blk] = ref.bits(hx_ref(blk))
    o = int(off[0]) - gen.WS_XCH
    if base == ptr["ws"] and 0 <= o < 256 * 16384 and (o >> 14) != wg:
        sl = slice((o & 16383) // 2, (o & 16383) // 2 + 512)
        assert (xw[wg][sl] == 0xffff).all()
        xw[wg][sl] = fake[sl]
s.hook = hook
for j in js:
    h = (13 + 9 * j) % 32; wg = gen.wg_of(h, j)
    K, V = ref.kv_head(d, h); kvl = ref.kv_layout(K, V)
    kvw = ws[h * gen.HS // 2:h * gen.HS // 2 + 66 * 8192].reshape(66, 16, 64, 8)
    kvw[:] = ref.bits(kvl); kvw[8*j:8*j+8, 8:] = 0x7fc1; kvw[8*j+1:8*j+9, :8] = 0x7fc1
    cw[:] = ref.bits(r.standard_normal(cw.shape, dtype=np.float32))
    gw[:] = g; blk = j if h < 16 else 15 - j; g0 = 128 * blk + 8 * (h & 15); gw[g0:g0 + 8] = np.nan
    gen.preset_sync(dbg, ws); dbg[16 + h] -= 1; dbg[48 + j] -= 1
    t0 = time.time()
    wv = s.run_wg(gen.NAME + "_kernel", wg, kaddr)
    print("wg", wg, "h", h, "j", j, "retry", wv[0].s[gen.S_RETRY], wv[0].counts, "%.1fs" % (time.time() - t0), "dbg", dbg[16 + h], dbg[48 + j])
    got = sim.bf16_to_f32(kvw)
    cmp("K", got[8*j:8*j+8, 8:], kvl[8*j:8*j+8, 8:]); cmp("V", got[8*j+1:8*j+9, :8], kvl[8*j+1:8*j+9, :8]); cmp("g", gw, g)
    for blk in (j + 1, (16 - j) & 15):
        cmp("hx sent %d" % blk, sim.bf16_to_f32(hxw[h, blk]), hx_ref(blk))
    ctx = ref.attn_head(d, h, K, V); ob = ref.b_head(d, h)
    for rb_ in (j, 15 - j):
        got = sim.bf16_to_f32(cw[rb_])
        cmp("oB rb=%d" % rb_, got[h], np.stack([ref.ctx_frag(ob, rb_ * 8 + rt, 0) for rt in range(8)]))
        cmp("ctx rb=%d" % rb_, got[32 + 4*h:36 + 4*h], np.stack([np.stack([ref.ctx_frag(ctx, rb_ * 8 + rt, p) for rt in range(8)]) for p in range(4)]))
    pp, rb_, cb = wg & 1, 4 * ((wg >> 1) & 3) + (wg >> 6), (wg >> 3) & 7
    rows = slice(128*rb_, 128*rb_+128)
    cat = np.zeros((8, 16, 160, 32), dtype=np.float32)
    cat[:, ref.LR[:, None], :, ref.PERM] = sim.bf16_to_f32(cw[rb_]).transpose(2, 3, 1, 0)
    cat = cat.reshape(128, 5120)
    n0 = 64 * (8, 10, 6, 12)[gen.OPT['bs']]; bsl = slice(n0, 1024) if pp else slice(0, n0)
    def part(cols):
        return g[rows, None] * (cat[:, 1024+2048*pp:3072+2048*pp] @ d["wo"][2048*pp:2048*pp+2048, cols]) + (1 - g[rows, None]) * (cat[:, bsl] @ d["wob"][bsl, cols])
    keep, sent = slice(128*cb+64*pp, 128*cb+64*pp+64), slice(128*cb+64*(1-pp), 128*cb+64*(1-pp)+64)
    def unx(a):
        return sim.bf16_to_f32(a).reshape(4, 2, 2, 4, 16, 2, 4).transpose(0, 1, 4, 2, 5, 3, 6).reshape(128, 64)
    cmp("sent", unx(xw[wg ^ 1]), part(sent))
    cmp("out", sim.bf16_to_f32(out.reshape(2048, 1024)[rows, keep]), part(keep) + unx(fake))
s.report()
```

```python
import sys, time, numpy as np
import sim, gen, ref
asm = open(sys.argv[1]).read()
opts = sys.argv[2:]
for a in opts:
    if '=' in a: gen.OPT[a.split('=')[0]] = int(a.split('=')[1])
qs = 40.0 if "big" in opts else 1.0
js = [int(a) for a in opts if a.isdigit()] or [0, 1, 6, 7]
d = ref.make_inputs(0, qs)
mem = sim.Mem(); ptr = {}
ws = np.full((gen.WS_DIAG + 0x100000) // 2, 0x7fc1, dtype=np.uint16)
out = np.full(2048 * 1024, 0x7fc1, dtype=np.uint16)
dbg = np.zeros(64, dtype=np.uint32)
for n in gen.KARG:
    if n == "ws": ptr[n] = mem.add("ws", ws)
    elif n == "out": ptr[n] = mem.add("out", out)
    elif n == "dbg": ptr[n] = mem.add("dbg", dbg)
    else: ptr[n] = mem.add("in_" + n, ref.bits(d[n]))
ka = np.zeros(13, dtype=np.uint64)
for n in gen.KARG: ka[gen.KARG[n] // 8] = ptr[n]
kaddr = mem.add("karg", ka)
s = sim.Sim(asm, mem)
def cmp(name, got, exp):
    err = np.abs(got - exp); den = np.abs(exp).max()
    rl = np.sqrt(np.nansum(err**2) / (exp**2).sum())
    print("%s %s: max err %.4g (max ref %.4g) rel_l2 %.3g nan %d" % ("ok " if rl < 5e-3 and not np.isnan(got).any() else "BAD", name, np.nanmax(err) if not np.isnan(err).all() else np.nan, den, rl, np.isnan(got).sum()))
cw = ws[gen.WS_CTX // 2:gen.WS_CTX // 2 + 16 * gen.CTX_RB // 2].reshape(16, gen.CTX_RB // 2)[:, :160 * 4096].reshape(16, 160, 8, 64, 8)
assert np.shares_memory(cw, ws)
gw = ws[gen.WS_G // 2:gen.WS_G // 2 + 4096].view(np.float32)
r = np.random.default_rng(1)
g = ref.gate(d)
xw = ws[gen.WS_XCH // 2:gen.WS_XCH // 2 + 256 * 8192].reshape(256, 8192)
fake = ref.bits(r.standard_normal(8192, dtype=np.float32))
hxw = ws[gen.WS_HX // 2:gen.WS_HX // 2 + 32 * 16 * 1024].reshape(32, 16, 2, 64, 8)
def hx_ref(blk):
    r0 = (128 * blk - 16) % 2048
    k, v = [ref.rb(d["x"][r0:r0 + 16] @ d["wqkv"][:, 1024 * i + 32 * h:1024 * i + 32 * h + 32]) for i in (1, 2)]
    e = np.arange(8)
    return np.stack([k[ref.LR[:, None], ref.PERM], v[4 * ref.G4[:, None] + (e & 3)[None, :], 16 * (e >> 2)[None, :] + ref.LR[:, None]]])
def hook(w, i, base, off):
    o = int(off[0]) - gen.WS_HX
    if base == ptr["ws"] and 0 <= o < 1 << 20 and i.ops[0].idx < 256:
        for blk in (j, 15 - j):
            if blk not in (0, 8) and (hxw[h, blk] == 0xffff).all():
                hxw[h, blk] = ref.bits(hx_ref(blk))
    o = int(off[0]) - gen.WS_XCH
    if base == ptr["ws"] and 0 <= o < 256 * 16384 and (o >> 14) != wg:
        sl = slice((o & 16383) // 2, (o & 16383) // 2 + 512)
        assert (xw[wg][sl] == 0xffff).all()
        xw[wg][sl] = fake[sl]
s.hook = hook
for j in js:
    h = (13 + 9 * j) % 32; wg = gen.wg_of(h, j)
    K, V = ref.kv_head(d, h); kvl = ref.kv_layout(K, V)
    kvw = ws[h * gen.HS // 2:h * gen.HS // 2 + 66 * 8192].reshape(66, 16, 64, 8)
    kvw[:] = ref.bits(kvl); kvw[8*j:8*j+8, 8:] = 0x7fc1; kvw[8*j+1:8*j+9, :8] = 0x7fc1
    cw[:] = ref.bits(r.standard_normal(cw.shape, dtype=np.float32))
    gw[:] = g; blk = j if h < 16 else 15 - j; g0 = 128 * blk + 8 * (h & 15); gw[g0:g0 + 8] = np.nan
    wbw = ws[gen.WS_WB // 2:gen.WS_WB // 2 + 32 * 98304].reshape(32, 16, 3, 64, 4, 8)
    wq3 = ref.bits(d["wqkv"]).reshape(16, 64, 3, 32, 4, 8).transpose(3, 0, 2, 1, 4, 5)
    rr = np.arange(64)[:, None]; wbr = wq3[:, :, :, rr, np.arange(4)[None, :] ^ (2 * ((rr >> 3) & 1))]
    wbw[:] = wbr; wbw[h & ~1:(h & ~1) + 2, (h & 1) * 8 + j] = 0x7fc1
    gen.preset_sync(dbg, ws); dbg[h >> 1] -= 1; dbg[16 + h] -= 1; dbg[48 + j] -= 1
    t0 = time.time()
    wv = s.run_wg(gen.NAME + "_kernel", wg, kaddr)
    print("wg", wg, "h", h, "j", j, "retry", wv[0].s[gen.S_RETRY], wv[0].counts, "%.1fs" % (time.time() - t0), "dbg", dbg[16 + h], dbg[48 + j])
    got = sim.bf16_to_f32(kvw)
    cmp("K", got[8*j:8*j+8, 8:], kvl[8*j:8*j+8, 8:]); cmp("V", got[8*j+1:8*j+9, :8], kvl[8*j+1:8*j+9, :8]); cmp("g", gw, g)
    if gen.OPT["wb"]: print("ok  wb" if np.array_equal(wbw, wbr) and dbg[h >> 1] == 16 else "BAD wb")
    for blk in (j + 1, (16 - j) & 15):
        cmp("hx sent %d" % blk, sim.bf16_to_f32(hxw[h, blk]), hx_ref(blk))
    ctx = ref.attn_head(d, h, K, V); ob = ref.b_head(d, h)
    for rb_ in (j, 15 - j):
        got = sim.bf16_to_f32(cw[rb_])
        cmp("oB rb=%d" % rb_, got[h], np.stack([ref.ctx_frag(ob, rb_ * 8 + rt, 0) for rt in range(8)]))
        cmp("ctx rb=%d" % rb_, got[32 + 4*h:36 + 4*h], np.stack([np.stack([ref.ctx_frag(ctx, rb_ * 8 + rt, p) for rt in range(8)]) for p in range(4)]))
    pp, rb_, cb = wg & 1, 4 * ((wg >> 1) & 3) + (wg >> 6), (wg >> 3) & 7
    rows = slice(128*rb_, 128*rb_+128)
    cat = np.zeros((8, 16, 160, 32), dtype=np.float32)
    cat[:, ref.LR[:, None], :, ref.PERM] = sim.bf16_to_f32(cw[rb_]).transpose(2, 3, 1, 0)
    cat = cat.reshape(128, 5120)
    n0 = 64 * (8, 10, 6, 12)[gen.OPT['bs']]; bsl = slice(n0, 1024) if pp else slice(0, n0)
    def part(cols):
        return g[rows, None] * (cat[:, 1024+2048*pp:3072+2048*pp] @ d["wo"][2048*pp:2048*pp+2048, cols]) + (1 - g[rows, None]) * (cat[:, bsl] @ d["wob"][bsl, cols])
    keep, sent = slice(128*cb+64*pp, 128*cb+64*pp+64), slice(128*cb+64*(1-pp), 128*cb+64*(1-pp)+64)
    def unx(a):
        return sim.bf16_to_f32(a).reshape(4, 2, 2, 4, 16, 2, 4).transpose(0, 1, 4, 2, 5, 3, 6).reshape(128, 64)
    cmp("sent", unx(xw[wg ^ 1]), part(sent))
    cmp("out", sim.bf16_to_f32(out.reshape(2048, 1024)[rows, keep]), part(keep) + unx(fake))
s.report()
```

```python
import re
import numpy as np

U32 = np.uint32
F32 = np.float32
LANES = np.arange(64, dtype=np.uint32)


class SimError(Exception):
    pass


def f2u(x):
    return int(np.array(x, dtype=F32).view(U32))


def bf16_round(x):
    u = np.ascontiguousarray(x, dtype=F32).view(U32).astype(np.uint64)
    r = ((u + 0x7FFF + ((u >> 16) & 1)) >> 16).astype(U32) & 0xFFFF
    nan = np.isnan(x)
    if nan.any():
        r = np.where(nan, U32(0x7FC0), r)
    return r


def bf16_to_f32(u16):
    return (u16.astype(U32) << 16).view(F32)


FCONST = {"0.5": 0.5, "-0.5": -0.5, "1.0": 1.0, "-1.0": -1.0, "2.0": 2.0, "-2.0": -2.0, "4.0": 4.0, "-4.0": -4.0}
SPECIAL = {"vcc": 106, "vcc_lo": 106, "vcc_hi": 107, "m0": 124, "exec": 126, "exec_lo": 126, "exec_hi": 127}


class Op:
    __slots__ = ("kind", "idx", "n", "val", "neg", "abs")

    def __init__(self, t):
        t = t.strip()
        self.neg = self.abs = False
        self.n = 1
        self.val = None
        self.idx = None
        if t in FCONST:
            self.kind = "c"
            self.val = f2u(FCONST[t])
            return
        if t.startswith("-") and t[1:2] in "vsa|" and not t[1:2].isdigit():
            self.neg = True
            t = t[1:]
        if t.startswith("|"):
            self.abs = True
            t = t.strip("|")
        if t in SPECIAL:
            self.kind = "s"
            self.idx = SPECIAL[t]
            self.n = 2 if t in ("vcc", "exec") else 1
            return
        m = re.fullmatch(r"([vsa])(\d+)", t)
        if m:
            self.kind = m.group(1)
            self.idx = int(m.group(2))
        else:
            m = re.fullmatch(r"([vsa])\[(\d+):(\d+)\]", t)
            if m:
                self.kind = m.group(1)
                self.idx = int(m.group(2))
                self.n = int(m.group(3)) - self.idx + 1
            elif t == "off":
                self.kind = "off"
                return
            else:
                try:
                    self.val = int(t, 0) & 0xFFFFFFFFFFFFFFFF
                    self.kind = "c"
                except ValueError:
                    self.kind = "label"
                    self.val = t
                return
        if self.kind == "a":
            self.kind = "v"
            self.idx += 256

    def regs(self):
        if self.kind in ("v", "s"):
            return [(self.kind, self.idx + i) for i in range(self.n)]
        return []


TRANS = ("v_exp_f32", "v_log_f32", "v_rcp_f32", "v_rsq_f32", "v_sqrt_f32")


class Ins:
    __slots__ = ("text", "mn", "ops", "mods", "line", "cls", "defs", "uses", "vdefs", "vuses", "sdefs", "suses", "ws", "cuse", "abuse")

    def __init__(self, text, line):
        self.text = text
        self.line = line
        parts = text.split(None, 1)
        mn = parts[0]
        for suf in ("_e32", "_e64"):
            if mn.endswith(suf):
                mn = mn[:-4]
        self.mn = mn
        rest = parts[1] if len(parts) > 1 else ""
        self.mods = {}
        self.ops = []
        self.ws = 1
        if mn == "s_waitcnt":
            for k, v in re.findall(r"(vmcnt|lgkmcnt|expcnt)\((\d+)\)", rest):
                self.mods[k] = int(v)
        elif mn == "s_getreg_b32":
            self.ops = [Op(rest.split(",")[0])]
        else:
            toks = []
            depth = 0
            cur = ""
            for ch in rest:
                if ch == "[":
                    depth += 1
                if ch == "]":
                    depth -= 1
                if ch == "," and depth == 0:
                    toks.append(cur)
                    cur = ""
                else:
                    cur += ch
            if cur.strip():
                toks.append(cur)
            if toks:
                last = toks[-1].split()
                if mn in ("buffer_wbl2", "buffer_inv"):
                    toks = []
                    ms = last
                else:
                    toks[-1] = last[0]
                    ms = last[1:]
                for m in ms:
                    if ":" in m:
                        k, v = m.split(":", 1)
                        self.mods[k] = v if v.startswith("[") else int(v, 0)
                    else:
                        self.mods[m] = True
            self.ops = [Op(t) for t in toks]
        self.classify()

    def classify(self):
        mn, o = self.mn, self.ops
        defs, uses = [], []
        self.cuse = []
        self.abuse = []
        R = lambda i: o[i].regs()
        if mn.startswith("v_mfma") or mn.startswith("v_smfmac"):
            self.cls = "mfma"
            defs = R(0)
            self.abuse = [r[1] for r in R(1) + R(2)]
            if mn.startswith("v_smfmac"):
                self.abuse += [r[1] for r in R(3)]
                self.cuse = [r[1] for r in R(0)]
                uses = R(0) + R(1) + R(2) + R(3)
            else:
                self.cuse = [r[1] for r in R(3)]
                uses = R(1) + R(2) + R(3)
        elif mn.startswith("v_"):
            self.cls = "trans" if mn in TRANS else "valu"
            if mn.startswith("v_permlane"):
                defs = R(0) + R(1)
                uses = R(0) + R(1)
            elif mn.startswith("v_cmp"):
                defs = R(0)
                uses = R(1) + R(2)
            elif mn == "v_nop":
                pass
            else:
                defs = R(0)
                for i in range(1, len(o)):
                    uses += R(i)
                if mn in ("v_fmac_f32", "v_writelane_b32", "v_dot2c_f32_bf16") or mn.endswith("_dpp"):
                    uses += R(0)
        elif mn.startswith("ds_"):
            self.cls = "ds"
            if "read" in mn or "swizzle" in mn or "bpermute" in mn:
                defs = R(0)
                for i in range(1, len(o)):
                    uses += R(i)
            else:
                for i in range(len(o)):
                    uses += R(i)
        elif mn.startswith("buffer_") or mn.startswith("global_"):
            self.cls = "vmem"
            if mn in ("buffer_wbl2", "buffer_inv"):
                pass
            elif "load" in mn and "lds" not in self.mods:
                defs = R(0)
                for i in range(1, len(o)):
                    uses += R(i)
            else:
                for i in range(len(o)):
                    uses += R(i)
                if "lds" in self.mods:
                    uses.append(("s", 124))
                if "atomic" in mn and "sc0" in self.mods:
                    defs = R(0)
        elif mn.startswith("s_load") or mn in ("s_memtime", "s_memrealtime"):
            self.cls = "smem"
            defs = R(0)
            if len(o) > 1:
                uses = R(1)
        else:
            self.cls = "salu"
            if mn == "s_nop":
                self.ws = o[0].val + 1
            elif mn.startswith("s_cmp") or mn.startswith("s_bitcmp"):
                uses = R(0) + R(1)
            elif mn.startswith("s_cbranch") or mn in ("s_branch", "s_barrier", "s_waitcnt", "s_endpgm", "s_setprio", "s_sleep"):
                pass
            else:
                defs = R(0)
                for i in range(1, len(o)):
                    uses += R(i)
                if mn in ("s_and_saveexec_b64", "s_or_saveexec_b64"):
                    defs += [("s", 126), ("s", 127)]
                if mn in ("s_addk_i32",):
                    uses += R(0)
        self.defs, self.uses = defs, uses
        self.vdefs = [r[1] for r in defs if r[0] == "v"]
        self.vuses = [r[1] for r in uses if r[0] == "v"]
        self.sdefs = [r[1] for r in defs if r[0] == "s"]
        self.suses = [r[1] for r in uses if r[0] == "s"]


def parse(asm):
    ins, labels = [], {}
    intext = False
    for ln, raw in enumerate(asm.split("\n"), 1):
        s = raw.split(";")[0].split("//")[0].strip()
        if not s:
            continue
        if s.startswith(".text"):
            intext = True
            continue
        if s.startswith(".section"):
            intext = False
            continue
        if not intext:
            continue
        if s.endswith(":"):
            labels[s[:-1]] = len(ins)
            continue
        if s.startswith("."):
            continue
        ins.append(Ins(s, ln))
    return ins, labels


class Mem:
    def __init__(self):
        self.bufs = []
        self.next = 0x7F0000000000

    def add(self, name, arr):
        arr = np.ascontiguousarray(arr).view(np.uint8).reshape(-1)
        base = self.next
        self.next += (len(arr) + 0xFFFFFFF) & ~0xFFFFFFF
        self.next += 0x10000000
        self.bufs.append((base, arr, name))
        return base

    def find(self, lo, hi):
        for base, arr, name in self.bufs:
            if base <= lo and hi <= base + len(arr):
                return base, arr, name
        raise SimError("global access outside any buffer: %x..%x" % (lo, hi))


class Wave:
    def __init__(self, wid):
        self.wid = wid
        self.v = np.zeros((512, 64), dtype=U32)
        self.v[:] = 0x7FC0DEAD
        self.s = [0xDEADBEEF] * 128
        self.s[126] = self.s[127] = 0xFFFFFFFF
        self.scc = 0
        self.pc = 0
        self.done = False
        self.t = 0
        self.vq = []
        self.lq = []
        self.pend = {}
        self.wr_valu = [-99] * 512
        self.wr_trans = [-99] * 512
        self.wr_dot = [-99] * 512
        self.wr_mfma = [-99] * 512
        self.mfma_dtuple = {}
        self.rd_mfma_c = [-99] * 512
        self.st_data = [-99] * 512
        self.swr_valu = [-99] * 128
        self.m0_t = -99
        self.counts = {}


class Sim:
    def __init__(self, asm, mem=None, lds_bytes=163840, data=True, autowait=None, verbose=False):
        self.ins, self.labels = parse(asm)
        self.mem = mem
        self.data = data
        self.lds_bytes = lds_bytes
        self.autowait = autowait
        self.autonop = {}
        self.errors = {}
        self.info = {}
        self.verbose = verbose
        self.hook = None
        self.bank_done = set()

    def err(self, w, i, msg):
        k = (i.line, msg.split(":")[0])
        if k not in self.errors:
            self.errors[k] = "line %d wave %d: %s  || %s" % (i.line, w.wid, msg, i.text)

    def rd(self, w, o, k=0):
        if o.kind == "v":
            x = w.v[o.idx + k]
        elif o.kind == "s":
            x = np.full(64, w.s[o.idx + k], dtype=U32)
        else:
            x = np.full(64, o.val & 0xFFFFFFFF, dtype=U32)
        return x

    def rdf(self, w, o, k=0):
        x = self.rd(w, o, k).view(F32)
        if o.abs:
            x = np.abs(x)
        if o.neg:
            x = -x
        return x

    def srd(self, w, o, k=0):
        if o.kind == "s":
            return w.s[o.idx + k]
        if o.kind == "c":
            return (o.val >> (32 * k)) & 0xFFFFFFFF
        if o.kind == "label":
            return 0
        raise SimError("bad scalar operand")

    def s64(self, w, o):
        return self.srd(w, o, 0) | (self.srd(w, o, 1) << 32)

    def execmask(self, w):
        e = w.s[126] | (w.s[127] << 32)
        if e == 0xFFFFFFFFFFFFFFFF:
            return None
        return np.array([(e >> i) & 1 for i in range(64)], dtype=bool)

    def wr(self, w, o, x, k=0):
        x = np.asarray(x)
        if x.dtype == F32:
            x = x.view(U32)
        elif x.dtype != U32:
            x = (x.astype(np.int64) & 0xFFFFFFFF).astype(U32)
        m = self.execmask(w)
        if m is None:
            w.v[o.idx + k] = x
        else:
            w.v[o.idx + k] = np.where(m, x, w.v[o.idx + k])

    def wmask(self, w, o, b):
        m = self.execmask(w)
        if m is not None:
            b = b & m
        e = 0
        for i in np.nonzero(b)[0]:
            e |= 1 << int(i)
        w.s[o.idx] = e & 0xFFFFFFFF
        w.s[o.idx + 1] = e >> 32

    def rmask(self, w, o):
        e = w.s[o.idx] | (w.s[o.idx + 1] << 32)
        return np.array([(e >> i) & 1 for i in range(64)], dtype=bool)

    def retire(self, w, q, n):
        while len(q) > n:
            oid, regs = q.pop(0)
            self.done_epoch[oid] = self.epoch
            for r in regs:
                if w.pend.get(r, (None, None))[1] == oid:
                    del w.pend[r]

    def newop(self, w, kind, regs):
        oid = len(self.done_epoch)
        self.done_epoch.append(1 << 30)
        self.op_wave.append(w.wid)
        self.op_isds.append(kind == "lg")
        q = w.vq if kind == "vm" else w.lq
        q.append((oid, regs))
        for r in regs:
            w.pend[r] = (kind, oid)
        if kind == "vm" and len(q) > 63:
            self.retire(w, q, 63)
            self.info["vmcnt>63"] = self.info.get("vmcnt>63", 0) + 1
        return oid

    def check_pending(self, w, i, ii):
        if self.autowait is not None and ii in self.autowait:
            aw = self.autowait[ii]
            if "vmcnt" in aw:
                self.retire(w, w.vq, aw["vmcnt"])
            if "lgkmcnt" in aw:
                self.retire(w, w.lq, aw["lgkmcnt"])
            w.t += 1
        if not w.pend:
            return
        for r in i.uses + i.defs:
            p = w.pend.get(r)
            if p is None:
                continue
            kind, oid = p
            q = w.vq if kind == "vm" else w.lq
            if r in i.defs and r not in i.uses and ((kind == "lg" and i.cls == "ds") or (kind == "vm" and i.cls == "vmem")):
                continue
            pos = [x[0] for x in q].index(oid)
            n = len(q) - 1 - pos
            if kind == "lg":
                if self.op_smem.get(oid):
                    n = 0
                else:
                    n -= sum(1 for x in q[pos:] if self.op_smem.get(x[0]))
                n = min(n, 15)
            if self.autowait is not None:
                aw = self.autowait.setdefault(ii, {})
                key = "vmcnt" if kind == "vm" else "lgkmcnt"
                aw[key] = min(aw.get(key, 99), n)
            else:
                self.err(w, i, "missing waitcnt: %s%d needs %s(%d)" % (r[0], r[1], kind, n))
            self.retire(w, q, n)

    def hazards(self, w, i, ii):
        have = self.autonop.get(ii, 0)
        w.t += have
        t = w.t
        cls = i.cls

        def need(arr, regs, n, what):
            for r in regs:
                d = t - arr[r] - 1
                if d < n:
                    if self.autowait is not None:
                        self.autonop[ii] = max(self.autonop.get(ii, 0), have + n - d)
                    else:
                        self.err(w, i, "hazard %s: reg %d distance %d < %d" % (what, r, d, n))
                        return

        if cls == "mfma":
            need(w.wr_valu, i.vuses, 2, "valu->mfma")
            need(w.wr_mfma, i.abuse, 8, "mfmaD->mfmaAB")
            if i.cuse:
                tup = (i.cuse[0], len(i.cuse), i.mn)
                for r in i.cuse:
                    if t - w.wr_mfma[r] - 1 < 6 and w.mfma_dtuple.get(r) != tup:
                        self.err(w, i, "hazard mfmaD->mfmaC overlap: reg %d" % r)
            if i.vdefs[0] not in i.cuse:
                need(w.wr_mfma, i.vdefs, 6, "mfmaD->mfmaD waw")
        elif cls in ("valu", "trans"):
            need(w.wr_mfma, i.vuses + i.vdefs, 8, "mfmaD->valu")
            need(w.rd_mfma_c, i.vdefs, 3, "mfmaC war valu")
            need(w.st_data, i.vdefs, 2, "store data war")
            if cls == "valu":
                need(w.wr_trans, i.vuses, 1, "trans->valu")
            if i.mn.startswith("v_permlane") or i.mn.endswith("_dpp"):
                need(w.wr_valu, i.vuses, 2, "valu->permlane/dpp")
            if i.mn in ("v_readfirstlane_b32", "v_readlane_b32"):
                need(w.wr_valu, i.vuses, 1, "valu->readlane")
            need(w.swr_valu, i.suses, 2, "valu sgpr->valu")
            if not i.mn.startswith("v_dot"):
                need(w.wr_dot, i.vuses + i.vdefs, 3, "dot->valu")
        elif cls in ("ds", "vmem"):
            need(w.wr_mfma, i.vuses + i.vdefs, 8, "mfmaD->mem")
            need(w.wr_trans, i.vuses, 1, "trans->mem")
            need(w.st_data, i.vdefs, 1, "store data war")
            if cls == "vmem":
                need(w.swr_valu, i.suses, 5, "valu sgpr->vmem")
                if "lds" in i.mods and t - w.m0_t - 1 < 1:
                    self.err(w, i, "hazard m0->dma")
        elif cls == "salu":
            need(w.swr_valu, i.suses, 1, "valu sgpr->salu")
        if cls == "mfma":
            tup = (i.vdefs[0], len(i.vdefs), i.mn)
            for r in i.vdefs:
                w.wr_mfma[r] = t
                w.mfma_dtuple[r] = tup
            for r in i.cuse:
                w.rd_mfma_c[r] = t
        elif cls in ("valu", "trans"):
            for r in i.vdefs:
                w.wr_valu[r] = t
                if cls == "trans":
                    w.wr_trans[r] = t
                if i.mn.startswith("v_dot"):
                    w.wr_dot[r] = t
            for r in i.sdefs:
                w.swr_valu[r] = t
        elif cls == "vmem" and "store" in i.mn and (i.mn.endswith("x4") or i.mn.endswith("x3")):
            for r in i.ops[0].regs():
                w.st_data[r[1]] = t
        elif cls == "salu" and 124 in i.sdefs:
            w.m0_t = t
        w.t += i.ws

    def lds_access(self, w, i, addrs, nbytes, oid, write, dma=False):
        m = self.execmask(w)
        if m is not None:
            addrs = addrs[m]
        if len(addrs) == 0:
            return None
        if int(addrs.max()) + nbytes > self.lds_bytes:
            self.err(w, i, "LDS out of range: %d" % int(addrs.max()))
            raise SimError("LDS OOR line %d" % i.line)
        if (addrs % min(nbytes, 16)).any():
            self.err(w, i, "LDS misaligned")
        g = ((addrs[:, None] >> 2) + np.arange(nbytes // 4)[None, :]).reshape(-1)
        de = self.done_epoch
        for o in np.unique(self.lw[g]):
            if o < 0:
                if not write:
                    self.info["lds uninit read line %d" % i.line] = 1
                continue
            if self.op_wave[o] == w.wid:
                if self.op_isds[o] and not dma:
                    continue
                if de[o] > self.epoch:
                    self.err(w, i, "LDS race own-wave %s: earlier write not waited" % ("WAW" if write else "RAW"))
            elif de[o] >= self.epoch:
                self.err(w, i, "LDS race %s: write by wave %d not complete before barrier" % ("WAW" if write else "RAW", self.op_wave[o]))
        if write:
            for ow in range(self.nw):
                for o in np.unique(self.lr[ow][g]):
                    if o < 0:
                        continue
                    if ow == w.wid:
                        if dma and de[o] > self.epoch:
                            self.err(w, i, "LDS race own-wave WAR: read not waited")
                    elif de[o] >= self.epoch:
                        self.err(w, i, "LDS race WAR: read by wave %d not complete before barrier" % ow)
            self.lw[g] = oid
        else:
            self.lr[w.wid][g] = oid
        return g

    def bank_check(self, i, addrs, kind):
        if kind == "b128":
            groups = [[0, 1, 2, 3, 12, 13, 14, 15, 20, 21, 22, 23, 24, 25, 26, 27], [4, 5, 6, 7, 8, 9, 10, 11, 16, 17, 18, 19, 28, 29, 30, 31]]
            groups += [[x + 32 for x in g] for g in groups]
            n = 4
        else:
            groups = [list(range(32)), list(range(32, 64))]
            n = 2
        for g in groups:
            a = np.unique(addrs[g])
            b = (((a[:, None] >> 2) + np.arange(n)[None, :]) & 63).reshape(-1)
            c = np.bincount(b.astype(np.int64), minlength=64).max()
            if c > 1:
                self.info["bank conflict x%d line %d %s" % (c, i.line, i.mn)] = 1
                return

    def buf_addr(self, w, i, vo, srd, so, nbytes):
        base = w.s[srd.idx] | ((w.s[srd.idx + 1] & 0xFFFF) << 32)
        nrec = w.s[srd.idx + 2]
        if w.s[srd.idx + 3] != 0x20000:
            self.err(w, i, "bad SRD word3")
        off = np.full(64, self.srd(w, so) + i.mods.get("offset", 0), dtype=np.int64)
        if "offen" in i.mods:
            off += w.v[vo.idx].astype(np.int64)
        ok = off + nbytes <= nrec
        m = self.execmask(w)
        if m is not None:
            act = m
        else:
            act = np.ones(64, dtype=bool)
        if (act & ~ok).any():
            self.info["SRD range drop line %d" % i.line] = 1
        ok &= act
        if (off[ok] % min(nbytes, 4)).any():
            self.err(w, i, "global misaligned")
        return base, off, ok, act

    def gload(self, base, off, ok, nbytes):
        out = np.zeros((64, nbytes), dtype=np.uint8)
        if ok.any():
            lo = base + int(off[ok].min())
            hi = base + int(off[ok].max()) + nbytes
            b, arr, name = self.mem.find(lo, hi)
            if self.data:
                idx = (base - b + off[ok])[:, None] + np.arange(nbytes)[None, :]
                out[ok] = arr[idx]
        return out.view(U32)

    def gstore(self, base, off, ok, data):
        nbytes = data.shape[1] * 4
        if ok.any():
            lo = base + int(off[ok].min())
            hi = base + int(off[ok].max()) + nbytes
            b, arr, name = self.mem.find(lo, hi)
            if name.startswith("in"):
                raise SimError("store to input " + name)
            if self.data:
                idx = (base - b + off[ok])[:, None] + np.arange(nbytes)[None, :]
                arr[idx] = np.ascontiguousarray(data[ok]).view(np.uint8).reshape(-1, nbytes)

    def frag(self, w, o):
        x = w.v[o.idx:o.idx + o.n]
        lo = (x << 16).view(F32)
        hi = (x & 0xFFFF0000).view(F32)
        e = np.stack([lo, hi], axis=1).reshape(2 * o.n, 64)
        return e.reshape(2 * o.n, 4, 16).transpose(2, 1, 0).reshape(16, 8 * o.n)

    def step(self, w):
        ii = w.pc
        i = self.ins[ii]
        self.check_pending(w, i, ii)
        self.hazards(w, i, ii)
        w.counts[i.cls] = w.counts.get(i.cls, 0) + 1
        w.pc += 1
        mn, o = i.mn, i.ops
        cls = i.cls
        if cls == "mfma":
            if not self.data:
                return
            if mn == "v_smfmac_f32_16x16x64_bf16":
                Ac = self.frag(w, o[1]).reshape(16, 4, 8)
                Bf = self.frag(w, o[2]).reshape(16, 4, 2, 8).transpose(0, 2, 1, 3).reshape(16, 64)
                idx = w.v[o[3].idx].reshape(4, 16).T.astype(np.int64)
                e = np.arange(8)
                kk = 16 * np.arange(4)[None, :, None] + 4 * (e >> 1)[None, None, :] + ((idx[:, :, None] >> (2 * e)[None, None, :]) & 3)
                with np.errstate(all="ignore"):
                    D = np.einsum("mge,nmge->mn", Ac, Bf[:, kk])
                    D = D.reshape(4, 4, 16).transpose(1, 0, 2).reshape(4, 64) + w.v[o[0].idx:o[0].idx + 4].view(F32)
                w.v[o[0].idx:o[0].idx + 4] = D.astype(F32).view(U32)
                return
            if mn != "v_mfma_f32_16x16x32_bf16":
                raise SimError("unsupported " + mn)
            A = self.frag(w, o[1])
            B = self.frag(w, o[2])
            with np.errstate(all="ignore"):
                D = A @ B.T
                D = D.reshape(4, 4, 16).transpose(1, 0, 2).reshape(4, 64)
                if o[3].kind == "v":
                    D = D + w.v[o[3].idx:o[3].idx + 4].view(F32)
                elif o[3].val != 0:
                    raise SimError("const C")
            w.v[o[0].idx:o[0].idx + 4] = D.astype(F32).view(U32)
            return
        if cls in ("valu", "trans"):
            self.valu(w, i)
            return
        if cls == "ds":
            self.dsop(w, i)
            return
        if cls == "vmem":
            self.vmem(w, i)
            return
        if cls == "smem":
            oid = self.newop(w, "lg", i.defs if mn != "s_memtime" else [])
            self.op_smem[oid] = True
            if mn.startswith("s_load"):
                a = self.s64(w, o[1]) + o[2].val
                b, arr, _ = self.mem.find(a, a + 4 * o[0].n)
                vals = arr[a - b:a - b + 4 * o[0].n].view(U32)
                for k in range(o[0].n):
                    w.s[o[0].idx + k] = int(vals[k])
            else:
                w.s[o[0].idx] = w.t & 0xFFFFFFFF
                w.s[o[0].idx + 1] = 0
            return
        return self.salu(w, i)

    def salu(self, w, i):
        mn, o = i.mn, i.ops
        S = lambda k: self.srd(w, o[k])
        M = 0xFFFFFFFF
        sg = lambda x: x - (1 << 32) if x >> 31 else x

        def st(x, scc=None):
            w.s[o[0].idx] = x & M
            if scc is not None:
                w.scc = int(scc)

        if mn == "s_waitcnt":
            if "vmcnt" in i.mods:
                self.retire(w, w.vq, i.mods["vmcnt"])
            if "lgkmcnt" in i.mods:
                n = i.mods["lgkmcnt"]
                if n == 0 or not any(self.op_smem.get(x[0]) for x in w.lq):
                    self.retire(w, w.lq, n)
                else:
                    sm = [x for x in w.lq if self.op_smem.get(x[0])]
                    w.lq[:] = [x for x in w.lq if not self.op_smem.get(x[0])]
                    self.retire(w, w.lq, n)
                    w.lq[:0] = sm
        elif mn == "s_barrier":
            return "barrier"
        elif mn == "s_endpgm":
            self.retire(w, w.vq, 0)
            self.retire(w, w.lq, 0)
            w.done = True
            return "end"
        elif mn in ("s_nop", "s_setprio", "s_sleep"):
            pass
        elif mn == "s_mov_b32":
            st(S(1))
        elif mn == "s_movk_i32":
            st(S(1))
        elif mn == "s_getreg_b32":
            st(w.wid & 1)
        elif mn == "s_getpc_b64":
            w.s[o[0].idx], w.s[o[0].idx + 1] = 0x1000, 0x7E
        elif mn == "s_mov_b64":
            a, b = self.srd(w, o[1], 0), self.srd(w, o[1], 1)
            w.s[o[0].idx], w.s[o[0].idx + 1] = a, b
        elif mn == "s_add_u32":
            x = S(1) + S(2)
            st(x, x >> 32)
        elif mn == "s_addc_u32":
            x = S(1) + S(2) + w.scc
            st(x, x >> 32)
        elif mn == "s_sub_u32":
            x = S(1) - S(2)
            st(x, x < 0)
        elif mn == "s_subb_u32":
            x = S(1) - S(2) - w.scc
            st(x, x < 0)
        elif mn == "s_add_i32":
            st(S(1) + S(2), 0)
        elif mn == "s_sub_i32":
            st(S(1) - S(2), 0)
        elif mn == "s_mul_i32":
            st(S(1) * S(2))
        elif mn == "s_lshl_b32":
            x = (S(1) << (S(2) & 31)) & M
            st(x, x != 0)
        elif mn == "s_lshr_b32":
            x = S(1) >> (S(2) & 31)
            st(x, x != 0)
        elif mn == "s_and_b32":
            x = S(1) & S(2)
            st(x, x != 0)
        elif mn == "s_andn2_b32":
            x = S(1) & ~S(2) & M
            st(x, x != 0)
        elif mn == "s_or_b32":
            x = S(1) | S(2)
            st(x, x != 0)
        elif mn == "s_xor_b32":
            x = S(1) ^ S(2)
            st(x, x != 0)
        elif mn == "s_min_u32":
            st(min(S(1), S(2)), S(1) < S(2))
        elif mn == "s_max_u32":
            st(max(S(1), S(2)), S(1) > S(2))
        elif mn == "s_max_i32":
            st(max(sg(S(1)), sg(S(2))), sg(S(1)) > sg(S(2)))
        elif mn == "s_bfe_u32":
            x = (S(1) >> (S(2) & 31)) & ((1 << ((S(2) >> 16) & 0x7F)) - 1)
            st(x, x != 0)
        elif mn == "s_cselect_b32":
            st(S(1) if w.scc else S(2))
        elif mn in ("s_or_b64", "s_and_b64", "s_andn2_b64", "s_xor_b64"):
            a, b = self.s64(w, o[1]), self.s64(w, o[2])
            x = {"s_or_b64": a | b, "s_and_b64": a & b, "s_andn2_b64": a & ~b, "s_xor_b64": a ^ b}[mn]
            w.s[o[0].idx], w.s[o[0].idx + 1] = x & M, (x >> 32) & M
            w.scc = int(x != 0)
        elif mn == "s_and_saveexec_b64":
            e = w.s[126] | (w.s[127] << 32)
            x = e & self.s64(w, o[1])
            w.s[o[0].idx], w.s[o[0].idx + 1] = e & M, e >> 32
            w.s[126], w.s[127] = x & M, x >> 32
            w.scc = int(x != 0)
        elif mn.startswith("s_cmp_"):
            c, ty = mn.split("_")[2:4]
            if ty == "u64":
                a, b = self.s64(w, o[0]), self.s64(w, o[1])
            else:
                a, b = S(0), S(1)
            if ty == "i32":
                a, b = sg(a), sg(b)
            w.scc = int({"eq": a == b, "lg": a != b, "lt": a < b, "le": a <= b, "gt": a > b, "ge": a >= b}[c])
        elif mn == "s_bitcmp1_b32":
            w.scc = (S(0) >> (S(1) & 31)) & 1
        elif mn == "s_bitcmp0_b32":
            w.scc = 1 - ((S(0) >> (S(1) & 31)) & 1)
        elif mn == "s_branch":
            w.pc = self.labels[o[0].val]
        elif mn.startswith("s_cbranch"):
            c = mn[10:]
            vcc = w.s[106] | w.s[107]
            ex = w.s[126] | w.s[127]
            if c in ("vccz", "vccnz") and w.t - 1 - max(w.swr_valu[106], w.swr_valu[107]) - 1 < 1:
                pass
            if {"scc0": not w.scc, "scc1": w.scc, "vccz": not vcc, "vccnz": vcc, "execz": not ex, "execnz": ex}[c]:
                w.pc = self.labels[o[0].val]
        else:
            raise SimError("unsupported salu " + i.text)

    def valu(self, w, i):
        mn, o = i.mn, i.ops
        R = lambda k: self.rd(w, o[k])
        L = lambda k: self.rd(w, o[k]).astype(np.int64)
        Fv = lambda k: self.rdf(w, o[k])
        W = lambda x: self.wr(w, o[0], x)
        with np.errstate(all="ignore"):
            if mn in ("v_mov_b32", "v_accvgpr_read_b32", "v_accvgpr_write_b32", "v_accvgpr_mov_b32"):
                W(R(1).copy())
            elif mn == "v_nop":
                pass
            elif mn == "v_mov_b64":
                assert o[1].kind == "c" and o[1].val == 0
                self.wr(w, o[0], np.zeros(64, dtype=U32), 0)
                self.wr(w, o[0], np.zeros(64, dtype=U32), 1)
            elif mn == "v_exp_f32":
                if self.data:
                    W(np.exp2(Fv(1)).astype(F32))
            elif mn == "v_cvt_pk_bf16_f32":
                if self.data:
                    W(bf16_round(Fv(1)) | (bf16_round(Fv(2)) << 16))
            elif mn == "v_add_u32":
                W(L(1) + L(2))
            elif mn in ("v_add_co_u32", "v_addc_co_u32"):
                W(L(2) + L(3))
            elif mn == "v_sub_u32":
                W(L(1) - L(2))
            elif mn == "v_subrev_u32":
                W(L(2) - L(1))
            elif mn == "v_lshlrev_b32":
                W(L(2) << (L(1) & 31))
            elif mn == "v_lshrrev_b32":
                W(L(2) >> (L(1) & 31))
            elif mn == "v_and_b32":
                W(R(1) & R(2))
            elif mn == "v_or_b32":
                W(R(1) | R(2))
            elif mn == "v_xor_b32":
                W(R(1) ^ R(2))
            elif mn == "v_lshl_add_u32":
                W((L(1) << (L(2) & 31)) + L(3))
            elif mn == "v_lshl_or_b32":
                W((L(1) << (L(2) & 31)) | L(3))
            elif mn == "v_add_lshl_u32":
                W(((L(1) + L(2)) & 0xFFFFFFFF) << (L(3) & 31))
            elif mn == "v_and_or_b32":
                W((R(1) & R(2)) | R(3))
            elif mn == "v_add3_u32":
                W(L(1) + L(2) + L(3))
            elif mn == "v_or3_b32":
                W(R(1) | R(2) | R(3))
            elif mn == "v_mul_u32_u24":
                W((L(1) & 0xFFFFFF) * (L(2) & 0xFFFFFF))
            elif mn == "v_mad_u32_u24":
                W((L(1) & 0xFFFFFF) * (L(2) & 0xFFFFFF) + L(3))
            elif mn == "v_mul_lo_u32":
                W((R(1).astype(np.uint64) * R(2).astype(np.uint64)).astype(U32))
            elif mn == "v_bfe_u32":
                W((L(1) >> (L(2) & 31)) & ((1 << (L(3) & 31)) - 1))
            elif mn == "v_min_u32":
                W(np.minimum(L(1), L(2)))
            elif mn == "v_max3_u32":
                W(np.maximum(np.maximum(L(1), L(2)), L(3)))
            elif mn == "v_max_u32":
                W(np.maximum(L(1), L(2)))
            elif mn == "v_readfirstlane_b32":
                m = self.execmask(w)
                l = 0 if m is None or not m.any() else int(np.nonzero(m)[0][0])
                w.s[o[0].idx] = int(R(1)[l])
            elif mn == "v_readlane_b32":
                w.s[o[0].idx] = int(R(1)[self.srd(w, o[2]) & 63])
            elif mn == "v_writelane_b32":
                w.v[o[0].idx][self.srd(w, o[2]) & 63] = self.srd(w, o[1])
            elif mn == "v_cndmask_b32":
                W(np.where(self.rmask(w, o[3]), R(2), R(1)))
            elif mn.startswith("v_cmp_"):
                c, ty = mn.split("_")[2:4]
                if ty == "f32":
                    a, b = Fv(1), Fv(2)
                elif ty == "i32":
                    a, b = R(1).view(np.int32), R(2).view(np.int32)
                else:
                    a, b = R(1), R(2)
                r = {"eq": a == b, "ne": a != b, "lt": a < b, "le": a <= b, "gt": a > b, "ge": a >= b,
                     "nle": ~(a <= b), "nge": ~(a >= b), "nlt": ~(a < b), "ngt": ~(a > b), "neq": ~(a == b)}[c]
                if not self.data and ty == "f32":
                    r = np.full(64, bool(self.force_fcmp))
                self.wmask(w, o[0], r)
            elif mn == "v_add_f32":
                W(Fv(1) + Fv(2))
            elif mn == "v_sub_f32":
                W(Fv(1) - Fv(2))
            elif mn == "v_subrev_f32":
                W(Fv(2) - Fv(1))
            elif mn == "v_mul_f32":
                W(Fv(1) * Fv(2))
            elif mn == "v_fma_f32":
                W((Fv(1).astype(np.float64) * Fv(2) + Fv(3)).astype(F32))
            elif mn == "v_fmac_f32":
                W((Fv(1).astype(np.float64) * Fv(2) + Fv(0)).astype(F32))
            elif mn == "v_dot2c_f32_bf16":
                a_, b_ = R(1), R(2)
                W(((a_ << 16).view(F32).astype(np.float64) * (b_ << 16).view(F32) + (a_ & 0xFFFF0000).view(F32).astype(np.float64) * (b_ & 0xFFFF0000).view(F32) + Fv(0)).astype(F32))
            elif mn == "v_max_f32":
                W(np.fmax(Fv(1), Fv(2)))
            elif mn == "v_min_f32":
                W(np.fmin(Fv(1), Fv(2)))
            elif mn == "v_max3_f32":
                W(np.fmax(np.fmax(Fv(1), Fv(2)), Fv(3)))
            elif mn == "v_rcp_f32":
                W((F32(1) / Fv(1)).astype(F32))
            elif mn in ("v_pk_mul_f32", "v_pk_add_f32", "v_pk_fma_f32"):
                ns = 3 if mn == "v_pk_fma_f32" else 2
                sel = eval(i.mods.get("op_sel", "[0,0,0]"))
                selh = eval(i.mods.get("op_sel_hi", "[1,1,1]"))
                res = []
                for s_ in (sel, selh):
                    x = [self.rdf(w, o[k + 1], s_[k] if o[k + 1].kind != "c" else 0) for k in range(ns)]
                    if mn == "v_pk_mul_f32":
                        res.append(x[0] * x[1])
                    elif mn == "v_pk_add_f32":
                        res.append(x[0] + x[1])
                    else:
                        res.append((x[0].astype(np.float64) * x[1] + x[2]).astype(F32))
                self.wr(w, o[0], res[0], 0)
                self.wr(w, o[0], res[1], 1)
            elif mn == "v_permlane32_swap_b32":
                a, b = w.v[o[0].idx], w.v[o[1].idx]
                t = a[32:].copy()
                a[32:] = b[:32]
                b[:32] = t
            elif mn == "v_permlane16_swap_b32":
                a, b = w.v[o[0].idx], w.v[o[1].idx]
                for r in (0, 32):
                    t = a[r + 16:r + 32].copy()
                    a[r + 16:r + 32] = b[r:r + 16]
                    b[r:r + 16] = t
            elif mn in ("v_add_f32_dpp", "v_max_f32_dpp", "v_mov_b32_dpp"):
                src = R(1)
                if "row_ror" in i.mods:
                    n = i.mods["row_ror"]
                    idx = (LANES & 48) | ((LANES + 16 - n) & 15)
                elif "quad_perm" in i.mods:
                    p = np.array(eval(i.mods["quad_perm"]), dtype=U32)
                    idx = (LANES & 60) | p[LANES & 3]
                else:
                    raise SimError("dpp mode")
                src = src[idx]
                if mn == "v_mov_b32_dpp":
                    W(src)
                elif mn == "v_add_f32_dpp":
                    W(src.view(F32) + Fv(2))
                else:
                    W(np.fmax(src.view(F32), Fv(2)))
            else:
                raise SimError("unsupported valu " + i.text)

    def dsop(self, w, i):
        mn, o = i.mn, i.ops
        off = i.mods.get("offset", 0)
        lds32 = self.lds.view(U32)
        m = self.execmask(w)
        if mn.startswith("ds_read"):
            n = o[0].n
            addrs = w.v[o[1].idx].astype(np.int64) + off
            oid = self.newop(w, "lg", i.defs)
            g = self.lds_access(w, i, addrs, 4 * n, oid, False)
            if m is None and n >= 2 and i.line not in self.bank_done:
                self.bank_done.add(i.line)
                self.bank_check(i, addrs, "b128" if n == 4 else "b64")
            if not self.data and not (mn == "ds_read_b32"):
                return
            if mn == "ds_read_b64_tr_b16":
                if m is not None:
                    self.err(w, i, "tr read with partial exec")
                d = lds32[g].reshape(64, 2).copy().view(np.uint16).reshape(4, 4, 4, 4)
                t = d.transpose(0, 2, 3, 1).reshape(64, 4)
                t = np.ascontiguousarray(t).view(U32)
                w.v[o[0].idx] = t[:, 0]
                w.v[o[0].idx + 1] = t[:, 1]
            elif g is not None:
                d = lds32[g].reshape(-1, n)
                for k in range(n):
                    if m is None:
                        w.v[o[0].idx + k] = d[:, k]
                    else:
                        w.v[o[0].idx + k][m] = d[:, k]
        elif mn.startswith("ds_write"):
            n = o[1].n
            addrs = w.v[o[0].idx].astype(np.int64) + off
            oid = self.newop(w, "lg", [])
            g = self.lds_access(w, i, addrs, 4 * n, oid, True)
            if g is not None:
                d = w.v[o[1].idx:o[1].idx + n].T
                if m is not None:
                    d = d[m]
                lds32[g] = d.reshape(-1)
        else:
            raise SimError("unsupported ds " + i.text)

    def vmem(self, w, i):
        mn, o = i.mn, i.ops
        if mn in ("buffer_wbl2", "buffer_inv"):
            self.newop(w, "vm", [])
            return
        if mn == "global_load_dword":
            self.newop(w, "vm", i.defs)
            return
        n = {"dword": 1, "dwordx2": 2, "dwordx4": 4, "add": 1}[mn.split("_")[-1]]
        if "lds" in i.mods:
            base, off, ok, act = self.buf_addr(w, i, o[0], o[1], o[2], 4 * n)
            d = self.gload(base, off, ok, 4 * n)
            oid = self.newop(w, "vm", [])
            addrs = (w.s[124] & 0x3FFFC) + i.mods.get("offset", 0) + LANES.astype(np.int64) * (4 * n)
            g = self.lds_access(w, i, addrs, 4 * n, oid, True, dma=True)
            if g is not None and self.data:
                self.lds.view(U32)[g] = d[act].reshape(-1)
        elif "load" in mn:
            base, off, ok, act = self.buf_addr(w, i, o[1], o[2], o[3], 4 * n)
            sv = self.data
            if n == 1:
                self.data = True
            d = self.gload(base, off, ok, 4 * n)
            self.data = sv
            self.newop(w, "vm", i.defs)
            for k in range(n):
                self.wr(w, o[0], d[:, k].copy(), k)
        elif "store" in mn:
            base, off, ok, act = self.buf_addr(w, i, o[1], o[2], o[3], 4 * n)
            self.gstore(base, off, ok, w.v[o[0].idx:o[0].idx + n].T)
            if self.hook:
                self.hook(w, i, base, off)
            self.newop(w, "vm", [])
        elif "atomic_add" in mn:
            base, off, ok, act = self.buf_addr(w, i, o[1], o[2], o[3], 4)
            old = np.zeros(64, dtype=U32)
            for l in np.nonzero(ok)[0]:
                a = base + int(off[l])
                b, arr, _ = self.mem.find(a, a + 4)
                x = arr[a - b:a - b + 4].view(U32)
                old[l] = x[0]
                x[0] = (int(x[0]) + int(w.v[o[0].idx][l])) & 0xFFFFFFFF
            self.newop(w, "vm", i.defs)
            if i.defs:
                self.wr(w, o[0], old)
        else:
            raise SimError("unsupported vmem " + i.text)

    def run_wg(self, label, wg, kernarg_addr, nw=4, force_fcmp=False, maxsteps=3000000):
        self.nw = nw
        self.force_fcmp = force_fcmp
        self.lds = np.zeros(self.lds_bytes, dtype=np.uint8)
        self.lds.view(U32)[:] = 0x7FC0BEEF
        self.lw = np.full(self.lds_bytes // 4, -1, dtype=np.int64)
        self.lr = [np.full(self.lds_bytes // 4, -1, dtype=np.int64) for _ in range(nw)]
        self.done_epoch, self.op_wave, self.op_isds, self.op_smem = [], [], [], {}
        self.epoch = 0
        waves = []
        for k in range(nw):
            w = Wave(k)
            w.pc = self.labels[label]
            w.s[0], w.s[1], w.s[2] = kernarg_addr & 0xFFFFFFFF, kernarg_addr >> 32, wg
            w.v[0] = LANES + 64 * k
            waves.append(w)
        self.waves = waves
        steps = 0
        while True:
            res = []
            for w in waves:
                if w.done:
                    continue
                while True:
                    steps += 1
                    if steps > maxsteps:
                        raise SimError("too many steps (hang?) at line %d" % self.ins[w.pc].line)
                    r = self.step(w)
                    if r:
                        res.append(r)
                        break
            if all(w.done for w in waves):
                break
            if "end" in res and "barrier" in res:
                raise SimError("barrier count mismatch between waves")
            self.epoch += 1
        return waves

    def report(self):
        for k in sorted(self.errors):
            print("ERROR", self.errors[k])
        for k in sorted(self.info):
            print("info:", k)
        return len(self.errors)
```

```python
import sys, time, numpy as np
import sim, gen, ref
asm = open(sys.argv[1]).read()
opts = sys.argv[2:]
for a in opts:
    if '=' in a: gen.OPT[a.split('=')[0]] = int(a.split('=')[1])
qs = 40.0 if "big" in opts else 1.0
js = [int(a) for a in opts if a.isdigit()] or [0, 1, 6, 7]
d = ref.make_inputs(0, qs)
mem = sim.Mem(); ptr = {}
ws = np.full((gen.WS_DIAG + 0x100000) // 2, 0x7fc1, dtype=np.uint16)
out = np.full(2048 * 1024, 0x7fc1, dtype=np.uint16)
dbg = np.zeros(64, dtype=np.uint32)
for n in gen.KARG:
    if n == "ws": ptr[n] = mem.add("ws", ws)
    elif n == "out": ptr[n] = mem.add("out", out)
    elif n == "dbg": ptr[n] = mem.add("dbg", dbg)
    else: ptr[n] = mem.add("in_" + n, ref.bits(d[n]))
ka = np.zeros(13, dtype=np.uint64)
for n in gen.KARG: ka[gen.KARG[n] // 8] = ptr[n]
kaddr = mem.add("karg", ka)
s = sim.Sim(asm, mem)
def cmp(name, got, exp):
    err = np.abs(got - exp); den = np.abs(exp).max()
    rl = np.sqrt(np.nansum(err**2) / (exp**2).sum())
    print("%s %s: max err %.4g (max ref %.4g) rel_l2 %.3g nan %d" % ("ok " if rl < 5e-3 and not np.isnan(got).any() else "BAD", name, np.nanmax(err) if not np.isnan(err).all() else np.nan, den, rl, np.isnan(got).sum()))
cw = ws[gen.WS_CTX // 2:gen.WS_CTX // 2 + 16 * gen.CTX_RB // 2].reshape(16, gen.CTX_RB // 2)[:, :160 * 4096].reshape(16, 160, 8, 64, 8)
assert np.shares_memory(cw, ws)
gw = ws[gen.WS_G // 2:gen.WS_G // 2 + 4096].view(np.float32)
r = np.random.default_rng(1)
g = ref.gate(d)
xw = ws[gen.WS_XCH // 2:gen.WS_XCH // 2 + 3 * 256 * 8192].reshape(3, 256, 8192)
fake = ref.bits(r.standard_normal((3, 8192), dtype=np.float32))
hxw = ws[gen.WS_HX // 2:gen.WS_HX // 2 + 32 * 16 * 1024].reshape(32, 16, 2, 64, 8)
def hx_ref(blk):
    r0 = (128 * blk - 16) % 2048
    k, v = [ref.rb(d["x"][r0:r0 + 16] @ d["wqkv"][:, 1024 * i + 32 * h:1024 * i + 32 * h + 32]) for i in (1, 2)]
    e = np.arange(8)
    return np.stack([k[ref.LR[:, None], ref.PERM], v[4 * ref.G4[:, None] + (e & 3)[None, :], 16 * (e >> 2)[None, :] + ref.LR[:, None]]])
def hook(w, i, base, off):
    o = int(off[0]) - gen.WS_HX
    if base == ptr["ws"] and 0 <= o < 1 << 20 and i.ops[0].idx < 256:
        for blk in (j, 15 - j):
            if blk not in (0, 8) and (hxw[h, blk] == 0xffff).all():
                hxw[h, blk] = ref.bits(hx_ref(blk))
    o = int(off[0]) - gen.WS_XCH
    if base == ptr["ws"] and 0 <= o < 3 << 22 and ((o >> 14) & 255) != wg:
        k = o >> 22; sl = slice((o & 16383) // 2, (o & 16383) // 2 + 512)
        assert ((o >> 14) & 255) == wg ^ (k + 1) and (xw[k, wg][sl] == 0xffff).all()
        xw[k, wg][sl] = fake[k][sl]
s.hook = hook
for j in js:
    h = (13 + 9 * j) % 32; wg = gen.wg_of(h, j)
    K, V = ref.kv_head(d, h); kvl = ref.kv_layout(K, V)
    kvw = ws[h * gen.HS // 2:h * gen.HS // 2 + 66 * 8192].reshape(66, 16, 64, 8)
    kvw[:] = ref.bits(kvl); kvw[8*j:8*j+8, 8:] = 0x7fc1; kvw[8*j+1:8*j+9, :8] = 0x7fc1
    cw[:] = ref.bits(r.standard_normal(cw.shape, dtype=np.float32))
    gw[:] = g; blk = j if h < 16 else 15 - j; g0 = 128 * blk + 8 * (h & 15); gw[g0:g0 + 8] = np.nan
    wbw = ws[gen.WS_WB // 2:gen.WS_WB // 2 + 32 * 98304].reshape(32, 16, 3, 64, 4, 8)
    wq3 = ref.bits(d["wqkv"]).reshape(16, 64, 3, 32, 4, 8).transpose(3, 0, 2, 1, 4, 5)
    rr = np.arange(64)[:, None]; wbr = wq3[:, :, :, rr, np.arange(4)[None, :] ^ (2 * ((rr >> 3) & 1))]
    wbw[:] = wbr; wbw[h & ~1:(h & ~1) + 2, (h & 1) * 8 + j] = 0x7fc1
    gen.preset_sync(dbg, ws); dbg[h >> 1] -= 1; dbg[16 + h] -= 1; dbg[48 + j] -= 1
    t0 = time.time()
    wv = s.run_wg(gen.NAME + "_kernel", wg, kaddr)
    print("wg", wg, "h", h, "j", j, "retry", wv[0].s[gen.S_RETRY], wv[0].counts, "%.1fs" % (time.time() - t0), "dbg", dbg[16 + h], dbg[48 + j])
    got = sim.bf16_to_f32(kvw)
    cmp("K", got[8*j:8*j+8, 8:], kvl[8*j:8*j+8, 8:]); cmp("V", got[8*j+1:8*j+9, :8], kvl[8*j+1:8*j+9, :8]); cmp("g", gw, g)
    if gen.OPT["wb"]: print("ok  wb" if np.array_equal(wbw, wbr) and dbg[h >> 1] == 16 else "BAD wb")
    for blk in (j + 1, (16 - j) & 15):
        cmp("hx sent %d" % blk, sim.bf16_to_f32(hxw[h, blk]), hx_ref(blk))
    ctx = ref.attn_head(d, h, K, V); ob = ref.b_head(d, h)
    for rb_ in (j, 15 - j):
        got = sim.bf16_to_f32(cw[rb_])
        cmp("oB rb=%d" % rb_, got[h], np.stack([ref.ctx_frag(ob, rb_ * 8 + rt, 0) for rt in range(8)]))
        cmp("ctx rb=%d" % rb_, got[32 + 4*h:36 + 4*h], np.stack([np.stack([ref.ctx_frag(ctx, rb_ * 8 + rt, p) for rt in range(8)]) for p in range(4)]))
    pp, jt, cb = wg & 3, (wg & 4) + (wg >> 6), (wg >> 3) & 7
    rows = np.r_[128*jt:128*jt+128, 128*(15-jt):128*(15-jt)+128]
    cat = np.zeros((2, 8, 16, 160, 32), dtype=np.float32)
    for n_, rb_ in enumerate((jt, 15 - jt)):
        cat[n_][:, ref.LR[:, None], :, ref.PERM] = sim.bf16_to_f32(cw[rb_]).transpose(2, 3, 1, 0)
    cat = cat.reshape(256, 5120)
    def cols(k): return slice(128*cb + 32*(pp ^ k), 128*cb + 32*(pp ^ k) + 32)
    e_ = 64 * gen.OPT['bs']; bsl = slice(256*pp + e_, 256*pp+256) if pp & 1 else slice(256*pp, 256*pp+256+e_)
    def part(c):
        return g[rows, None] * (cat[:, 1024+1024*pp:2048+1024*pp] @ d["wo"][1024*pp:1024*pp+1024, c]) + (1 - g[rows, None]) * (cat[:, bsl] @ d["wob"][bsl, c])
    def unx(a):
        return sim.bf16_to_f32(a).reshape(4, 4, 4, 16, 2, 4).transpose(0, 1, 3, 4, 2, 5).reshape(256, 32)
    for k in (1, 2, 3): cmp("sent %d" % k, unx(xw[k - 1, wg ^ k]), part(cols(k)))
    cmp("out", sim.bf16_to_f32(out.reshape(2048, 1024)[rows][:, cols(0)]), part(cols(0)) + sum(unx(fake[k]) for k in range(3)))
s.report()
```
